```python
import torch

def _softmax(x, axis=-1):
    return torch.softmax(x, dim=axis)

def _gelu(x):
    return torch.nn.functional.gelu(x, approximate='tanh')

def _silu(x):
    return torch.nn.functional.silu(x)

def _sigmoid(x):
    return torch.sigmoid(x)

def _layernorm(x, axis=-1, eps=1e-05):
    m = x.mean(dim=axis, keepdim=True)
    v = x.var(dim=axis, keepdim=True, unbiased=False)
    return (x - m) / torch.sqrt(v + eps)

def _scatter_add(tgt, idx, src, axis=0):
    return tgt.clone().index_add_(axis, idx, src)

def _segment_sum(src, seg, n):
    out = torch.zeros((n,) + src.shape[1:], dtype=src.dtype)
    return out.index_add_(0, seg, src)

def _pad(x, pw):
    flat = tuple((v for pair in reversed(pw) for v in pair))
    return torch.nn.functional.pad(x, flat)
kernel_name = 'adaLN_cond__memory_aug_recurrent_mem_tr__dense_activation_silu__prompt'

def setup_inputs():

    _w = lambda a: (lambda t: t.to(torch.bfloat16) if t.is_floating_point() else t)(torch.as_tensor(a))

    def _A_setup():
        B, S, Dm = (1, 2048, 640)
        H, Dh = (32, 128)
        M, seg = (8, 32)
        seg = min(seg, S)
        S = S // seg * seg
        return {'x': _w((lambda *s: torch.randn(*s, dtype=torch.bfloat16) * 0.05)(B, S, Dm)), 'mem0': _w((lambda *s: torch.randn(*s, dtype=torch.bfloat16) * 0.8)(B, M, Dm)), 'Wq': _w((lambda *s: torch.randn(*s, dtype=torch.bfloat16) * 1.6)(Dm, H, Dh) * Dm ** (-0.5)), 'Wk': _w((lambda *s: torch.randn(*s, dtype=torch.bfloat16) * 1.6)(Dm, H, Dh) * Dm ** (-0.5)), 'Wv': _w((lambda *s: torch.randn(*s, dtype=torch.bfloat16) * 0.8)(Dm, H, Dh) * Dm ** (-0.5)), 'Wo': _w((lambda *s: torch.randn(*s, dtype=torch.bfloat16) * 0.8)(H, Dh, Dm) * (H * Dh) ** (-0.5)), 'seg_len': seg}
    _A_in = _A_setup()

    def _B_setup():
        B, S, D, F = (1, 2048, 640, 1728)
        return {'x': _w((lambda *s: torch.randn(*s, dtype=torch.bfloat16) * 0.05)(B, S, D)), 'w1': _w((lambda *s: torch.randn(*s, dtype=torch.bfloat16) * 3.2)(D, F) * D ** (-0.5)), 'w2': _w((lambda *s: torch.randn(*s, dtype=torch.bfloat16) * 0.2)(F, D) * F ** (-0.5))}
    _B_in = _B_setup()
    return {'A_x': _A_in['x'], 'A_mem0': _A_in['mem0'], 'A_Wq': _A_in['Wq'], 'A_Wk': _A_in['Wk'], 'A_Wv': _A_in['Wv'], 'A_Wo': _A_in['Wo'], 'A_seg_len': _A_in['seg_len'], 'B_x': _B_in['x'], 'B_w1': _B_in['w1'], 'B_w2': _B_in['w2'], 'c': _w((lambda *s: torch.randn(*s, dtype=torch.bfloat16) * 0.1)(1, 640) * 8.0), 'w_mod': _w((lambda *s: torch.randn(*s, dtype=torch.bfloat16) * 0.1)(640, 6 * 640) * 640 ** (-0.5) * 8.0)}

def reference(A_x, A_mem0, A_Wq, A_Wk, A_Wv, A_Wo, A_seg_len, B_x, B_w1, B_w2, c, w_mod):

    def _A_ref(x, mem0, Wq, Wk, Wv, Wo, seg_len):
        B, S, Dm = x.shape
        H, Dh = (Wq.shape[1], Wq.shape[2])
        M = mem0.shape[1]
        scale = Dh ** (-0.5)
        n_seg = S // seg_len
        L = M + seg_len
        idx = torch.arange(L)
        mask = (idx[:, None] < M) | (idx[:, None] >= idx[None, :])
        mem = mem0
        outs = []
        for s in range(n_seg):
            xs = x[:, s * seg_len:(s + 1) * seg_len, :].clone()
            h = torch.concatenate([mem, xs], axis=1)
            q = torch.einsum('btd,dhe->bhte', h, Wq)
            k = torch.einsum('btd,dhe->bhte', h, Wk)
            v = torch.einsum('btd,dhe->bhte', h, Wv)
            scores = torch.einsum('bhqe,bhke->bhqk', q, k) * scale
            scores = torch.where(mask[None, None], scores, -1000000000.0)
            p = _softmax(scores, axis=-1)
            o = torch.einsum('bhqk,bhke->bhqe', p, v)
            o = torch.einsum('bhte,hed->btd', o, Wo)
            mem = o[:, :M, :].clone()
            outs.append(o[:, M:, :])
        return torch.concatenate(outs, axis=1)

    def _B_ref(x, w1, w2):
        h = torch.einsum('bsd,df->bsf', x, w1)
        h = _silu(h)
        out = torch.einsum('bsf,fd->bsd', h, w2)
        return out
    x = A_x
    mod = (_silu(c) @ w_mod).reshape(c.shape[0], 6, 1, -1)
    sa, ca, ga, sb, cb, gb = (mod[:, 0].clone(), mod[:, 1].clone(), mod[:, 2].clone(), mod[:, 3].clone(), mod[:, 4].clone(), mod[:, 5].clone())
    h = _layernorm(x, axis=-1) * (1 + ca) + sa
    x = x + ga * _A_ref(h, A_mem0, A_Wq, A_Wk, A_Wv, A_Wo, A_seg_len)
    h = _layernorm(x, axis=-1) * (1 + cb) + sb
    x = x + gb * _B_ref(h, B_w1, B_w2)
    return x
```

```python
import re

REG_RE = re.compile(r'^(-|abs\()?\s*([vas])(?:(\d+)|\[(\d+):(\d+)\])\)?$')


def parse_reg(tok):
    tok = tok.strip()
    if tok in ('vcc', 'exec'):
        return [(tok, 0), (tok, 1)]
    if tok in ('vcc_lo', 'exec_lo'):
        return [(tok[:-3], 0)]
    if tok in ('vcc_hi', 'exec_hi'):
        return [(tok[:-3], 1)]
    if tok == 'm0':
        return [('m0', 0)]
    t = tok.replace('|', '')
    m = REG_RE.match(t)
    if not m:
        return []
    c = m.group(2)
    if m.group(3) is not None:
        return [(c, int(m.group(3)))]
    return [(c, i) for i in range(int(m.group(4)), int(m.group(5)) + 1)]


def split_ops(s):
    out, depth, cur = [], 0, ''
    for ch in s:
        if ch in '[(':
            depth += 1
        if ch in '])':
            depth -= 1
        if ch == ',' and depth == 0:
            out.append(cur.strip())
            cur = ''
        else:
            cur += ch
    if cur.strip():
        out.append(cur.strip())
    return out


TRANS = ('v_exp_f32', 'v_log_f32', 'v_rcp_f32', 'v_rsq_f32', 'v_sqrt_f32', 'v_sin_f32', 'v_cos_f32', 'v_rcp_iflag_f32')
NO_DST_SALU = ('s_cmp', 's_cbranch', 's_branch', 's_waitcnt', 's_barrier', 's_nop', 's_sleep', 's_setprio',
               's_endpgm', 's_bitcmp', 's_setreg', 's_sendmsg', 's_setpc')


class Ins:
    __slots__ = ('text', 'op', 'reads', 'writes', 'kind', 'passes', 'mods', 'srcc', 'ab', 'store_data', 'nop',
                 'label', 'addr_reads', 'idxreg')

    def __init__(self, text):
        self.text = text
        self.label = None
        self.reads, self.writes = [], []
        self.kind = 'other'
        self.passes = 0
        self.srcc, self.ab, self.store_data = [], [], []
        self.nop = 1
        self.mods = ''
        t = text.split(';')[0].strip()
        if t.endswith(':'):
            self.label = t[:-1]
            self.kind = 'label'
            self.op = ''
            self.nop = 0
            return
        if t.startswith('.') or not t:
            self.kind = 'directive'
            self.op = ''
            self.nop = 0
            return
        parts = t.split(None, 1)
        op = parts[0]
        self.op = op
        rest = parts[1] if len(parts) > 1 else ''
        ops = split_ops(rest)
        mods = ''
        if ops:
            last = ops[-1]
            depth = 0
            for i, ch in enumerate(last):
                if ch in '[(':
                    depth += 1
                if ch in '])':
                    depth -= 1
                if ch == ' ' and depth == 0:
                    mods = last[i + 1:]
                    ops[-1] = last[:i]
                    break
        self.mods = mods
        R = [parse_reg(o) for o in ops]
        base = op.replace('_e32', '').replace('_e64', '')
        if op.startswith('v_mfma') or op.startswith('v_smfmac'):
            self.kind = 'mfma'
            if '32x32' in op:
                self.passes = 8
            elif '16x16' in op:
                self.passes = 4
            else:
                raise ValueError('unknown mfma ' + op)
            self.writes = R[0]
            self.ab = R[1] + R[2]
            if op.startswith('v_smfmac'):
                self.srcc = R[0]
                self.ab = self.ab + R[3]
            else:
                self.srcc = R[3]
            self.reads = self.ab + self.srcc
        elif op.startswith('v_'):
            self.kind = 'valu'
            if base in TRANS:
                self.kind = 'trans'
            if op.startswith('v_cmpx'):
                self.writes = R[0] + [('exec', 0), ('exec', 1)]
                self.reads = sum(R[1:], [])
            elif op.startswith('v_permlane') and 'swap' in op:
                self.writes = R[0] + R[1]
                self.reads = R[0] + R[1]
            elif op.startswith('v_add_co') or op.startswith('v_sub_co') or op.startswith('v_subrev_co') or \
                    op.startswith('v_addc_co') or op.startswith('v_subb_co') or op.startswith('v_mad_u64') or \
                    op.startswith('v_div_scale'):
                self.writes = R[0] + R[1]
                self.reads = sum(R[2:], [])
            elif op == 'v_nop':
                pass
            else:
                self.writes = R[0]
                self.reads = sum(R[1:], [])
                if base.startswith('v_fmac') or base.startswith('v_mac') or base.startswith('v_dot2c') or \
                        base.startswith('v_pk_fmac') or op.startswith('v_writelane') or '_dpp' in op or \
                        'row_' in mods or 'quad_perm' in mods or 'sdwa' in op:
                    self.reads = self.reads + R[0]
        elif op.startswith('ds_'):
            self.kind = 'ds'
            if op.startswith('ds_read') or op.startswith('ds_bpermute') or op.startswith('ds_permute') or \
                    op.startswith('ds_swizzle') or '_rtn' in op:
                self.writes = R[0]
                self.reads = sum(R[1:], [])
                if 'd16' in op:
                    self.reads = self.reads + R[0]
            else:
                self.reads = sum(R, [])
        elif op.startswith('global_') or op.startswith('buffer_') or op.startswith('flat_'):
            self.kind = 'vmem'
            islds = ('_lds_' in op) or (' lds' in (' ' + mods))
            if op.startswith('buffer_inv') or op.startswith('buffer_wbl2'):
                pass
            elif islds:
                self.reads = sum(R, []) + [('m0', 0)]
                self.kind = 'vmem_lds'
            elif '_load' in op:
                self.writes = R[0]
                self.reads = sum(R[1:], [])
                if 'd16' in op:
                    self.reads = self.reads + R[0]
            elif '_store' in op:
                self.reads = sum(R, [])
                data = R[1] if op.startswith('global_') or op.startswith('flat_') else R[0]
                if len(data) >= 3:
                    self.store_data = data
            elif '_atomic' in op:
                if op.startswith('global_') and 'sc0' in mods:
                    self.writes = R[0]
                    self.reads = sum(R[1:], [])
                else:
                    self.reads = sum(R, [])
                    if 'sc0' in mods:
                        self.writes = R[0]
            else:
                raise ValueError('unknown vmem ' + op)
        elif op.startswith('s_load') or op.startswith('s_buffer_load') or op.startswith('s_memtime') or \
                op.startswith('s_memrealtime') or op.startswith('s_atomic'):
            self.kind = 'smem'
            self.writes = R[0]
            self.reads = sum(R[1:], [])
        elif op.startswith('s_'):
            self.kind = 'salu'
            if op == 's_nop':
                self.nop = int(ops[0], 0) + 1
            if any(op.startswith(p) for p in NO_DST_SALU):
                self.reads = sum(R, [])
                if 'vcc' in op:
                    self.reads += [('vcc', 0), ('vcc', 1)]
            else:
                self.writes = R[0] if R else []
                self.reads = sum(R[1:], [])
                if 'saveexec' in op:
                    self.writes = self.writes + [('exec', 0), ('exec', 1)]
        else:
            raise ValueError('unknown instr ' + text)

    def is_valu(self):
        return self.kind in ('valu', 'trans')

    def is_dpp(self):
        return self.is_valu() and ('_dpp' in self.op or 'row_' in self.mods or 'quad_perm' in self.mods or
                                   'wave_' in self.mods)


def inter(a, b):
    if not a or not b:
        return False
    sb = set(b)
    return any(x in sb for x in a)


def sgprs(l):
    return [x for x in l if x[0] in ('s', 'vcc')]


def vregs(l):
    return [x for x in l if x[0] in ('v', 'a')]


def required_ws(p, c):
    n = 0
    tbl_c_overlap = {2: 4, 4: 6, 8: 10, 16: 18}
    tbl_rw = {2: 5, 4: 8, 8: 12, 16: 20}
    tbl_war = {2: 1, 4: 3, 8: 7, 16: 15}
    if p.kind == 'mfma':
        if c.kind == 'mfma':
            if inter(p.writes, c.ab):
                n = max(n, tbl_rw[p.passes])
            if inter(p.writes, c.srcc):
                if not (p.writes == c.srcc and p.op == c.op):
                    n = max(n, tbl_c_overlap[p.passes])
            elif inter(p.writes, c.writes):
                n = max(n, tbl_c_overlap[p.passes])
        elif c.is_valu():
            if inter(p.writes, c.reads) or inter(p.writes, c.writes):
                n = max(n, tbl_rw[p.passes])
            if inter(p.srcc, c.writes):
                n = max(n, tbl_war[p.passes])
        elif c.kind in ('ds', 'vmem', 'vmem_lds'):
            if inter(p.writes, c.reads) or inter(p.writes, c.writes):
                n = max(n, tbl_rw[p.passes])
    if p.is_valu():
        pw_v = vregs(p.writes)
        pw_s = sgprs(p.writes)
        pw_exec = [x for x in p.writes if x[0] == 'exec']
        if c.kind == 'mfma':
            if inter(pw_v, c.reads):
                n = max(n, 2)
            if pw_exec:
                n = max(n, 4)
        if c.is_valu():
            if c.is_dpp() and inter(pw_v, c.reads):
                n = max(n, 2)
            if c.is_dpp() and pw_exec:
                n = max(n, 5)
            if c.op.startswith('v_permlane') and inter(pw_v, c.reads):
                n = max(n, 2)
            if c.op.startswith('v_permlane') and pw_exec:
                n = max(n, 4)
            if (c.op.startswith('v_readlane') or c.op.startswith('v_readfirstlane')) and inter(pw_v, c.reads):
                n = max(n, 1)
            if (c.op.startswith('v_readlane') or c.op.startswith('v_readfirstlane') or
                    c.op.startswith('v_writelane')) and pw_exec:
                n = max(n, 4)
            if inter(pw_s, c.reads):
                n = max(n, 4 if (c.op.startswith('v_readlane') or c.op.startswith('v_writelane') or
                                 c.op.startswith('v_div_fmas')) else 2)
            if c.op.startswith('v_div_fmas') and [x for x in p.writes if x[0] == 'vcc']:
                n = max(n, 4)
            if pw_exec and [x for x in c.reads if x[0] == 'exec']:
                n = max(n, 2)
            if p.kind == 'trans' and c.kind != 'trans' and inter(pw_v, c.reads + c.writes):
                n = max(n, 1)
            if ('sdwa' in p.op or 'op_sel' in p.mods or 'dst_sel' in p.mods) and inter(pw_v, c.reads + c.writes):
                n = max(n, 1)
        if p.kind == 'trans' and c.kind in ('mfma',) and inter(pw_v, c.reads):
            n = max(n, 2)
        if p.kind == 'trans' and c.kind in ('ds', 'vmem') and inter(pw_v, c.reads):
            n = max(n, 1)
        if c.kind in ('vmem', 'vmem_lds') and inter(pw_s, c.reads):
            n = max(n, 5)
        if c.kind in ('salu', 'smem') and inter(pw_s, c.reads):
            n = max(n, 1)
    if p.kind == 'salu':
        if [x for x in p.writes if x[0] == 'm0'] and (c.kind == 'vmem_lds' or 'addtid' in c.op or
                                                      c.op.startswith('s_movrel') or c.op.startswith('s_sendmsg')):
            n = max(n, 1)
    if p.store_data:
        if inter(p.store_data, c.writes):
            n = max(n, 2 if (c.is_valu() or c.kind == 'mfma') else 1)
    return n


class Asm:
    def __init__(self):
        self.lines = []
        self.uid = 0

    def __call__(self, s):
        for l in s.split('\n'):
            l = l.strip()
            if l:
                self.lines.append(l)

    def label(self, name):
        self.lines.append(name + ':')

    def newlabel(self, base='L'):
        self.uid += 1
        return '%s_%d' % (base, self.uid)

    def comment(self, s):
        self.lines.append('; ' + s)

    def finalize(self, check_waits=True, name=''):
        out = []
        hist = []
        vm, lg = [], []
        problems = []
        for text in self.lines:
            if text.startswith(';'):
                out.append('    ' + text)
                continue
            ins = Ins(text)
            if ins.kind in ('label', 'directive'):
                out.append(text if ins.kind == 'label' else '    ' + text)
                continue
            dist = 0
            need = 0
            for p in reversed(hist):
                r = required_ws(p, ins)
                if r > dist:
                    need = max(need, r - dist)
                dist += p.nop
                if dist >= 21:
                    break
            while need > 0:
                k = min(need, 16)
                nop = Ins('s_nop %d' % (k - 1))
                hist.append(nop)
                out.append('    s_nop %d' % (k - 1))
                need -= k
            if check_waits:
                if ins.op == 's_waitcnt':
                    m = re.search(r'vmcnt\((\d+)\)', text)
                    if m:
                        n = int(m.group(1))
                        if len(vm) > n:
                            vm = vm[len(vm) - n:] if n else []
                    m = re.search(r'lgkmcnt\((\d+)\)', text)
                    if m:
                        n = int(m.group(1))
                        if any(x.kind == 'smem' for x in lg) and n > 0:
                            pass
                        elif len(lg) > n:
                            lg = lg[len(lg) - n:] if n else []
                elif ins.op == 's_endpgm':
                    vm, lg = [], []
                else:
                    touched = ins.reads + ins.writes
                    for o in vm + lg:
                        if inter(o.writes, touched):
                            same_q = (o in vm and ins.kind in ('vmem',)) or (o.kind == 'ds' and ins.kind == 'ds')
                            if same_q and not inter(o.writes, ins.reads):
                                continue
                            if 'NOCHK' in text:
                                continue
                            problems.append('%s: "%s" touches pending result of "%s"' % (name, text, o.text))
                    if ins.kind in ('vmem', 'vmem_lds'):
                        vm.append(ins)
                        if len(vm) > 63:
                            problems.append('%s: vmcnt overflow at "%s"' % (name, text))
                            vm = vm[-63:]
                    elif ins.kind in ('ds', 'smem'):
                        lg.append(ins)
                        if len(lg) > 64:
                            lg = lg[-64:]
            hist.append(ins)
            if len(hist) > 40:
                hist = hist[-30:]
            out.append('    ' + text)
        if problems:
            for p in problems[:40]:
                print('WAITCHK', p)
            raise RuntimeError('%d waitcnt problems' % len(problems))
        return '\n'.join(out) + '\n'


def v(i, n=1):
    return 'v%d' % i if n == 1 else 'v[%d:%d]' % (i, i + n - 1)


def a(i, n=1):
    return 'a%d' % i if n == 1 else 'a[%d:%d]' % (i, i + n - 1)


def s(i, n=1):
    return 's%d' % i if n == 1 else 's[%d:%d]' % (i, i + n - 1)


def kernel_text(name, body, vgpr, sgpr=102, accum=None, extra=''):
    if accum is None:
        accum = (min(vgpr, 256) + 3) // 4 * 4
    code = """.text
.globl {n}
.p2align 8
.type {n},@function
{n}:
{b}
""".format(n=name, b=body)
    desc = """.section .rodata,"a"
.p2align 6
.amdhsa_kernel {n}
  .amdhsa_next_free_vgpr {v}
  .amdhsa_next_free_sgpr {s}
  .amdhsa_accum_offset {a}
  .amdhsa_group_segment_fixed_size 0
  .amdhsa_kernarg_size 120
  .amdhsa_user_sgpr_count 2
  .amdhsa_user_sgpr_kernarg_segment_ptr 1
  .amdhsa_system_sgpr_workgroup_id_x 1
{e}.end_amdhsa_kernel
""".format(n=name, v=vgpr, s=sgpr, a=accum, e=extra)
    return code, desc
```

```python
from asmlib import *
from layout import *
import math


def gen_attn():
    A = Asm()
    vm = Q(A, 'vmcnt', 63)
    A('s_cmp_ge_u32 s2, 512')
    A('s_cbranch_scc1 L_attn_exit')
    A('s_load_dwordx2 s[8:9], s[0:1], %d' % KA_WS)
    A('v_lshrrev_b32 v1, 6, v0')
    A('v_readfirstlane_b32 s12, v1')
    A('v_and_b32 v1, 63, v0')
    A('s_lshl_b32 s13, s2, 2')
    A('s_add_u32 s13, s13, s12')
    A('v_lshlrev_b32 v2, 4, v1')
    A('v_lshrrev_b32 v3, 4, v1')
    A('v_and_b32 v4, 15, v1')
    A('v_lshrrev_b32 v5, 2, v4')
    A('v_and_b32 v6, 1, v4')
    A('v_lshl_add_u32 v5, v5, 1, v6')
    A('v_lshlrev_b32 v5, 4, v5')
    A('v_lshl_add_u32 v5, v3, 7, v5')
    A('v_lshlrev_b32 v6, 3, v1')
    A('v_lshlrev_b32 v7, 2, v3')
    for r in range(4):
        A('v_add_u32 v8, %d, v7' % r)
        A('v_cmp_gt_u32 s[%d:%d], v8, v4' % (30 + 2 * r, 31 + 2 * r))
    A('s_waitcnt lgkmcnt(0)')
    A('s_lshl_b32 s3, s13, 14')
    A('s_add_u32 s14, s8, s3')
    A('s_addc_u32 s15, s9, 0')
    A('s_add_u32 s14, s14, 4096')
    A('s_addc_u32 s15, s15, 0')
    A('s_add_u32 s16, s14, 8192')
    A('s_addc_u32 s17, s15, 0')
    A('s_lshl_b32 s3, s13, 13')
    A('s_add_u32 s3, s3, %d' % (WS_Q + 4096))
    A('s_add_u32 s18, s8, s3')
    A('s_addc_u32 s19, s9, 0')
    A('s_lshl_b32 s3, s13, 11')
    A('s_add_u32 s3, s3, %d' % WS_KM)
    A('s_add_u32 s20, s8, s3')
    A('s_addc_u32 s21, s9, 0')
    A('s_add_u32 s22, s20, %d' % (WS_VM - WS_KM))
    A('s_addc_u32 s23, s21, 0')
    A('s_lshr_b32 s3, s13, 5')
    A('s_lshl_b32 s3, s3, 18')
    A('s_and_b32 s24, s13, 31')
    A('s_lshl_b32 s24, s24, 12')
    A('s_add_u32 s3, s3, s24')
    A('s_add_u32 s3, s3, %d' % WS_O)
    A('s_add_u32 s24, s8, s3')
    A('s_addc_u32 s25, s9, 0')
    A('s_add_u32 s26, s24, %d' % (128 * 1024))
    A('s_addc_u32 s27, s25, 0')
    A('s_mov_b32 s28, 0x%08x' % f32bits((128 ** -0.5) * math.log2(math.e)))
    QF, KF, KM, VT, VM = 12, 44, 76, 92, 124
    S00, S01, S11, SM0, SM1 = 132, 136, 140, 144, 148
    PB = [152, 156]
    PW = [160, 170]
    ONES, LS = 180, [184, 188]
    for ks in range(4):
        for qt in range(2):
            vm.issue('global_load_dwordx4 %s, v2, s[18:19] offset:%d' % (v(QF + (qt * 4 + ks) * 4, 4), (qt * 4 + ks) * 1024 - 4096))
        for rt in range(2):
            vm.issue('global_load_dwordx4 %s, v2, s[14:15] offset:%d' % (v(KF + (rt * 4 + ks) * 4, 4), (rt * 4 + ks) * 1024 - 4096))
        vm.issue('global_load_dwordx4 %s, v5, s[20:21] offset:%d' % (v(KM + ks * 4, 4), ks * 512), ('k', ks))
    for i in range(4):
        vm.issue('global_load_dwordx2 %s, v6, s[22:23] offset:%d' % (v(VM + 2 * i, 2), i * 512))
    for t in range(8):
        vm.issue('global_load_dwordx4 %s, v2, s[16:17] offset:%d' % (v(VT + t * 4, 4), t * 1024 - 4096), ('v', t))
    for qt in range(2):
        for i in range(0, 10, 2):
            A('v_mov_b64 %s, 0' % v(PW[qt] + i, 2))
    A('v_mov_b64 %s, 0' % v(PB[0] + 2, 2))
    for i in range(4):
        A('v_mov_b32 v%d, 0x3f803f80' % (ONES + i))
    A('v_mov_b32 v9, 0xfe000000')

    def mf(d, aa, bb, c):
        A('v_mfma_f32_16x16x32_bf16 %s, %s, %s, %s' % (v(d, 4), v(aa, 4), v(bb, 4), c))
    for ks in range(4):
        vm.wait(('k', ks))
        for d, aa, qt in ((S00, KF + ks * 4, 0), (SM0, KM + ks * 4, 0), (S01, KF + ks * 4, 1), (S11, KF + (4 + ks) * 4, 1), (SM1, KM + ks * 4, 1)):
            mf(d, aa, QF + (qt * 4 + ks) * 4, '0' if ks == 0 else v(d, 4))
    for qt in range(2):
        dg = S00 if qt == 0 else S11
        sm = SM0 if qt == 0 else SM1
        for r in range(4):
            A('v_cndmask_b32 v%d, v%d, v9, s[%d:%d]' % (dg + r, dg + r, 30 + 2 * r, 31 + 2 * r))
        vals = [sm, sm + 1] + [dg + r for r in range(4)] + ([S01 + r for r in range(4)] if qt else [])
        A('v_max3_f32 v10, v%d, v%d, v%d' % tuple(vals[0:3]))
        for i in range(3, len(vals) - 1, 2):
            A('v_max3_f32 v10, v10, v%d, v%d' % (vals[i], vals[i + 1]))
        A('v_max_f32 v10, v10, v%d' % vals[-1])
        for sw in ('32', '16'):
            A('v_mov_b32 v11, v10')
            A('v_permlane%s_swap_b32 v10, v11' % sw)
            A('v_max_f32 v10, v10, v11')
        A('v_mul_f32 v10, s28, v10')
        for r in vals:
            A('v_fma_f32 v%d, v%d, s28, -v10' % (r, r))
        for r in vals:
            A('v_exp_f32 v%d, v%d' % (r, r))
        A('v_cvt_pk_bf16_f32 v%d, v%d, v%d' % (PW[qt] + 2, sm, sm + 1))
        A('v_cvt_pk_bf16_f32 v%d, v%d, v%d' % (PW[qt] + 7, sm, sm + 1))
        if qt == 0:
            A('v_cvt_pk_bf16_f32 v%d, v%d, v%d' % (PB[0], S00, S00 + 1))
            A('v_cvt_pk_bf16_f32 v%d, v%d, v%d' % (PB[0] + 1, S00 + 2, S00 + 3))
        else:
            A('v_cvt_pk_bf16_f32 v%d, v%d, v%d' % (PB[1], S01, S01 + 1))
            A('v_cvt_pk_bf16_f32 v%d, v%d, v%d' % (PB[1] + 1, S01 + 2, S01 + 3))
            A('v_cvt_pk_bf16_f32 v%d, v%d, v%d' % (PB[1] + 2, S11, S11 + 1))
            A('v_cvt_pk_bf16_f32 v%d, v%d, v%d' % (PB[1] + 3, S11 + 2, S11 + 3))
        mf(LS[qt], ONES, PB[qt], '0')
        mf(LS[qt], ONES, PW[qt], v(LS[qt], 4))
    win = {2: 0, 0: 2, 3: 4, 1: 6}
    OA = QF
    for t in range(8):
        vm.wait(('v', t))
        for qt in range(2):
            d = OA + (qt * 8 + t) * 4
            mf(d, VT + t * 4, PB[qt], '0')
            mf(d, VM + (t >> 2) * 4, PW[qt] + win[t & 3], v(d, 4))
    for qt in range(2):
        A('v_rcp_f32 v10, v%d' % LS[qt])
        for tp in range(4):
            d = OA + (qt * 8 + 2 * tp) * 4
            for i in range(0, 8, 2):
                A('v_pk_mul_f32 %s, %s, v[10:11] op_sel_hi:[1,0]' % (v(d + i, 2), v(d + i, 2)))
            for i in range(4):
                A('v_cvt_pk_bf16_f32 v%d, v%d, v%d' % (d + i, d + 2 * i, d + 2 * i + 1))
            A('global_store_dwordx4 v2, %s, s[%d:%d] offset:%d' % (v(d, 4), 24 + 2 * qt, 25 + 2 * qt, tp * 1024))
    A.label('L_attn_exit')
    A('s_endpgm')
    return A


def gen_tgemm(kind):
    A = Asm()
    lg = Q(A, 'lgkmcnt', 15)
    vm = Q(A, 'vmcnt', 63)
    nm = kind
    if kind == 'oproj':
        KS, asrc, kaw, wbytes, modrow = 128, WS_O, KA_WO, 4096 * 1280, 2
    else:
        KS, asrc, kaw, wbytes, modrow = 54, WS_G, KA_W2, 1728 * 1280, 5
    NI = -(-KS // 4)
    D = 6
    A('s_cmp_ge_u32 s2, 256')
    A('s_cbranch_scc1 L_%s_exit' % nm)
    A('s_load_dwordx2 s[4:5], s[0:1], %d' % kaw)
    A('s_load_dwordx2 s[8:9], s[0:1], %d' % KA_WS)
    A('s_load_dwordx2 s[10:11], s[0:1], %d' % (KA_X if kind == 'oproj' else KA_OUT))
    A('v_lshrrev_b32 v1, 6, v0')
    A('v_readfirstlane_b32 s12, v1')
    A('v_and_b32 v1, 63, v0')
    A('s_and_b32 s13, s2, 7')
    A('s_lshl_b32 s13, s13, 2')
    A('s_bfe_u32 s3, s2, 0x20003')
    A('s_add_u32 s13, s13, s3')
    A('s_lshr_b32 s14, s2, 5')
    A('v_lshlrev_b32 v2, 4, v1')
    for t in range(1, 4):
        A('v_add_u32 v%d, %d, v2' % (2 + t, t * KS * 1024))
    for n in range(5):
        A('v_add_u32 v11, %d, v1' % (64 * n))
        A('v_mul_u32_u24 v12, 6554, v11')
        A('v_lshrrev_b32 v12, 16, v12')
        A('v_mul_u32_u24 v13, 10, v12')
        A('v_sub_u32 v13, v11, v13')
        A('v_mul_u32_u24 v12, 1280, v12')
        A('v_lshl_add_u32 v%d, v13, 4, v12' % (6 + n))
    A('s_mul_i32 s15, s12, 40960')
    A('v_lshrrev_b32 v12, 2, v1')
    A('v_mul_u32_u24 v12, 160, v12')
    A('v_and_b32 v13, 3, v1')
    A('v_lshl_add_u32 v12, v13, 3, v12')
    A('v_add_u32 v11, s15, v12')
    A('s_waitcnt lgkmcnt(0)')
    A('s_mov_b32 s6, %d' % wbytes)
    A('s_mov_b32 s7, 0x20000')
    A('s_mul_i32 s16, s12, %d' % (32 * 1280))
    A('s_mul_i32 s3, s14, 160')
    A('s_add_u32 s16, s16, s3')
    A('s_mul_i32 s3, s13, %d' % (4 * KS))
    A('s_add_u32 s3, s3, s12')
    A('s_lshl_b32 s3, s3, 10')
    A('s_add_u32 s3, s3, %d' % asrc)
    A('s_add_u32 s18, s8, s3')
    A('s_addc_u32 s19, s9, 0')
    AFR, WF, ACC = 16, [112, 132], 152

    def load(i):
        sl = i % D
        for n in range(5):
            A('s_add_u32 m0, s15, %d' % (sl * 5120 + n * 1024))
            vm.issue('buffer_load_dwordx4 v%d, s[4:7], s16 offen lds' % (6 + n), ('w', i))
        for t in range(4):
            vm.issue('global_load_dwordx4 %s, v%d, s[18:19]' % (v(AFR + sl * 16 + 4 * t, 4), 2 + t), ('a', i))
        A('s_add_u32 s16, s16, %d' % (128 * 1280))
        A('s_add_u32 s18, s18, 4096')
        A('s_addc_u32 s19, s19, 0')

    def wread(i):
        sl = i % D
        vm.wait(('w', i))
        for nt in range(5):
            for kh in range(2):
                lg.issue('ds_read_b64_tr_b16 %s, v11 offset:%d' % (v(WF[i & 1] + nt * 4 + 2 * kh, 2), sl * 5120 + nt * 32 + kh * 2560), ('wf', i))
    for i in range(min(D, NI)):
        load(i)
    wread(0)
    for i in range(NI):
        if i == NI - 1 and KS % 4:
            A('s_cmp_ge_u32 s12, %d' % (KS % 4))
            A('s_cbranch_scc1 L_%s_skip' % nm)
        lg.wait(('wf', i))
        vm.wait(('a', i))
        sl = i % D
        cnt = 0
        for nt in range(5):
            for t in range(4):
                d = ACC + (t * 5 + nt) * 4
                A('v_mfma_f32_16x16x32_bf16 %s, %s, %s, %s' % (v(d, 4), v(WF[i & 1] + nt * 4, 4), v(AFR + sl * 16 + 4 * t, 4), '0' if i == 0 else v(d, 4)))
                cnt += 1
                if cnt == 2 and i + 1 < NI:
                    wread(i + 1)
        if i + D < NI:
            load(i + D)
    if KS % 4:
        A.label('L_%s_skip' % nm)
    A('s_waitcnt vmcnt(0) lgkmcnt(0)')
    lg.q = []
    vm.q = []
    A('v_lshrrev_b32 v12, 4, v1')
    A('v_and_b32 v13, 15, v1')
    A('s_mul_i32 s3, s14, 320')
    A('s_add_u32 s3, s3, %d' % (WS_MOD + modrow * 2560))
    A('v_lshlrev_b32 v14, 4, v12')
    A('v_add_u32 v14, s3, v14')
    GT, RS = 16, 40
    for nt in range(5):
        A('global_load_dwordx4 %s, v14, s[8:9] offset:%d' % (v(GT + 4 * nt, 4), nt * 64))
    A('s_lshl_b32 s20, s13, 2')
    A('s_add_u32 s20, s20, s12')
    A('s_mul_i32 s3, s20, %d' % (16 * 1280))
    A('s_mul_i32 s21, s14, 160')
    A('s_add_u32 s3, s3, s21')
    A('v_mul_u32_u24 v15, 1280, v13')
    A('v_lshl_add_u32 v15, v12, 3, v15')
    A('v_add_u32 v15, s3, v15')
    A('s_mul_i32 s3, s20, 40')
    A('s_mul_i32 s21, s14, 5')
    A('s_add_u32 s3, s3, s21')
    A('s_lshl_b32 s3, s3, 10')
    A('s_add_u32 s3, s3, %d' % (WS_X1 + 2048))
    A('s_add_u32 s22, s8, s3')
    A('s_addc_u32 s23, s9, 0')
    for nt in range(5):
        if kind == 'oproj':
            A('global_load_dwordx2 %s, v15, s[10:11] offset:%d' % (v(RS + 4 * nt + 2, 2), nt * 32))
        else:
            A('global_load_dwordx4 %s, v2, s[22:23] offset:%d' % (v(RS + 4 * nt, 4), nt * 1024 - 2048))
    A('v_add_u32 v3, s15, v2')
    for q in range(20):
        A('ds_write_b128 v3, %s offset:%d' % (v(ACC + 4 * q, 4), q * 1024))
    A('s_waitcnt lgkmcnt(0)')
    A('s_barrier')
    A('s_mul_i32 s3, s12, 5120')
    A('v_add_u32 v3, s3, v2')
    A('v_add_u32 v4, 81920, v3')
    R = 64
    for sw in range(4):
        for nt in range(5):
            A('ds_read_b128 %s, v%d offset:%d' % (v(R + (sw * 5 + nt) * 4, 4), 3 + (sw >> 1), (sw & 1) * 40960 + nt * 1024))
    A('s_waitcnt vmcnt(0) lgkmcnt(0)')
    for e in range(0, 20, 2):
        A('v_pk_add_f32 %s, %s, %s' % (v(R + e, 2), v(R + e, 2), v(R + 20 + e, 2)))
        A('v_pk_add_f32 %s, %s, %s' % (v(R + 40 + e, 2), v(R + 40 + e, 2), v(R + 60 + e, 2)))
        A('v_pk_add_f32 %s, %s, %s' % (v(R + e, 2), v(R + e, 2), v(R + 40 + e, 2)))

    def rnd(r):
        A('v_cvt_pk_bf16_f32 v8, v%d, v%d' % (r, r + 1))
        A('v_lshlrev_b32 v%d, 16, v8' % r)
        A('v_and_b32 v%d, 0xffff0000, v8' % (r + 1))
    for nt in range(5):
        if kind == 'oproj':
            b = RS + 4 * nt
            A('v_lshlrev_b32 v%d, 16, v%d' % (b, b + 2))
            A('v_and_b32 v%d, 0xffff0000, v%d' % (b + 1, b + 2))
            A('v_lshlrev_b32 v%d, 16, v%d' % (b + 2, b + 3))
            A('v_and_b32 v%d, 0xffff0000, v%d' % (b + 3, b + 3))
        for hh in range(2):
            e = 4 * nt + 2 * hh
            rnd(R + e)
            A('v_pk_mul_f32 %s, %s, %s' % (v(R + e, 2), v(R + e, 2), v(GT + e, 2)))
            rnd(R + e)
            A('v_pk_add_f32 %s, %s, %s' % (v(R + e, 2), v(R + e, 2), v(RS + e, 2)))
            if kind == 'oproj':
                rnd(R + e)
            else:
                A('v_cvt_pk_bf16_f32 v%d, v%d, v%d' % (R + 40 + 2 * nt + hh, R + e, R + e + 1))
        if kind == 'oproj':
            A('global_store_dwordx4 v2, %s, s[22:23] offset:%d' % (v(R + 4 * nt, 4), nt * 1024 - 2048))
        else:
            A('global_store_dwordx2 v15, %s, s[10:11] offset:%d' % (v(R + 40 + 2 * nt, 2), nt * 32))
    A.label('L_%s_exit' % nm)
    A('s_endpgm')
    return A
```

```python
from asmlib import *
import math
import struct

from layout import *
PART_CH = 4224
PART_J = 80 * PART_CH
PART_SLOT = 2 * PART_J
MEMR_OFF = 0x100000

L_K = 0
L_V = 8192
L_X = 16384
L_L = 20480
L_R = 25600
L_DUMMY = 30720
L_MISC = 32000
L_W = 32768

SENT_F32 = 0xFFBFFFFF
NSTEP = 64


def frag_tables():
    ldsf = []
    for ks in range(5):
        if ks in (0, 2, 4):
            ldsf += [('L', ks, 2), ('L', ks, 3)]
        ldsf += [('L', ks, 4), ('L', ks, 5)]
    regf = []
    for hf in 'RL':
        for ks in range(5):
            for tt in range(6):
                if (hf, ks, tt) not in ldsf:
                    regf.append((hf, ks, tt))
    wof = [('O', ks, t) for t in range(5) for ks in range(2)]
    assert len(regf) == 44 and len(ldsf) == 16
    return regf, ldsf, wof


REGF, LDSF, WOF = frag_tables()
ALLF = REGF + WOF + LDSF


def wreg(f, lo=0, n=8):
    if f in WOF:
        return v(80 + WOF.index(f) * 8 + lo, n)
    i = REGF.index(f)
    if i < 32:
        return a(i * 8 + lo, n)
    return v(160 + (i - 32) * 8 + lo, n)


(vL16, vWl, vIdx, vPollX, vPollR, vStgW, vXW, vVR, vOW, vPW, vRed, vPubL, vPubR, vKMP, vT0, vT1) = range(16)
ACC = 16
AF = 40
TB = [60, 68]
SP = 76
sW, sH, sJ, sStep = 12, 13, 14, 15
sKV, sMEM, sPUB = 16, 18, 20
sSO = 22
sSlot, sRedF, sCnt = 27, 28, 29
sM1 = 30
sScale = 32
sT = 33
sJM = 34
sMK = 36
sSent = 38
sM0KV = 39
sTS = 40
sPrev = 42
sAcc = 76


def gen_chain(fast=True, stamps=False, nsteps=NSTEP, opt=()):
    A = Asm()
    lg = Q(A, 'lgkmcnt', 15)
    LOC = '' if fast else ' sc1'
    P = dict(lsleep=4, rgap=4, rsleep=0, rpre=5, rmask=11)
    for o in opt:
        if '=' in o:
            k, val = o.split('=')
            P[k] = int(val)

    def stamp(k):
        if not stamps:
            return
        if 'only' in P and k not in (P['only'], P.get('only2', -1)):
            return
        A('%s s[%d:%d]' % ('s_memrealtime' if 'abs' in opt else 's_memtime', sTS, sTS + 1))
        A('s_waitcnt lgkmcnt(0)')
        lg.q = []
        if 'abs' in opt:
            st0 = P.get('st', 20)
            A('s_cmp_eq_u32 s%d, %d' % (sStep, st0 + 1 if k < 4 else st0))
            A('s_cselect_b32 s%d, s%d, s%d' % (sAcc + k, sTS, sAcc + k))
        else:
            A('s_sub_u32 s%d, s%d, s%d' % (sT, sTS, sPrev))
            A('s_add_u32 s%d, s%d, s%d' % (sAcc + k, sAcc + k, sT))
            A('s_mov_b32 s%d, s%d' % (sPrev, sTS))

    def count(k):
        if stamps:
            A('s_add_u32 s%d, s%d, 1' % (sAcc + k, sAcc + k))

    A('s_cmp_ge_u32 s2, 256')
    A('s_cbranch_scc1 L_exit')
    A('s_load_dwordx2 s[4:5], s[0:1], 112')
    A('s_load_dwordx2 s[6:7], s[0:1], 104')
    A('s_load_dwordx2 s[56:57], s[0:1], 8')
    A('s_load_dwordx8 s[44:51], s[0:1], %d' % KA_WQ)
    A('s_memrealtime s[70:71]')
    A('s_getreg_b32 s%d, hwreg(HW_REG_XCC_ID, 0, 4)' % sJ)
    A('v_lshrrev_b32 v1, 6, v0')
    A('v_readfirstlane_b32 s%d, v1' % sW)
    A('v_and_b32 v%d, 63, v0' % vT1)
    A('s_waitcnt lgkmcnt(0)')
    if 'xo' in P:
        A('s_cmp_eq_u32 s%d, %d' % (sJ, P['xo']))
        A('s_cselect_b32 s3, 1, 8')
        A('s_cmp_eq_u32 s%d, 0' % sJ)
        A('s_cselect_b32 s%d, 0, s3' % sJ)
    A('s_cmp_ge_u32 s%d, 2' % sJ)
    A('s_cbranch_scc1 L_exit')
    A('s_cmp_lg_u32 s%d, 0' % sW)
    A('s_cbranch_scc1 L_tk_done')
    A('s_lshl_b32 s3, s%d, 6' % sJ)
    A('v_mov_b32 v2, s3')
    A('v_mov_b32 v3, 1')
    A('s_mov_b64 exec, 1')
    A('global_atomic_add v4, v2, v3, s[6:7] sc0')
    A('v_mov_b32 v5, %d' % L_MISC)
    A('s_waitcnt vmcnt(0)')
    A('ds_write_b32 v5, v4')
    A('s_waitcnt lgkmcnt(0)')
    A('s_mov_b64 exec, -1')
    A.label('L_tk_done')
    A('s_barrier')
    A('v_mov_b32 v5, %d' % L_MISC)
    A('ds_read_b32 v4, v5')
    A('s_waitcnt lgkmcnt(0)')
    A('v_readfirstlane_b32 s%d, v4' % sH)
    A('s_cmp_ge_u32 s%d, 32' % sH)
    A('s_cbranch_scc1 L_exit')

    lane = vT1
    G, C = 60, 61
    A('v_lshrrev_b32 v%d, 4, v%d' % (G, lane))
    A('v_and_b32 v%d, 15, v%d' % (C, lane))
    A('v_lshlrev_b32 v%d, 4, v%d' % (vL16, lane))
    A('s_lshl_b32 s3, s%d, 15' % sW)
    A('s_add_u32 s3, s3, %d' % L_W)
    A('v_add_u32 v%d, s3, v%d' % (vWl, vL16))
    A('v_and_b32 v62, 2, v%d' % C)
    A('v_cmp_ne_u32 vcc, 0, v62')
    A('v_mov_b32 v63, 0x4444')
    A('v_mov_b32 v64, 0xeeee')
    A('v_cndmask_b32 v%d, v63, v64, vcc' % vIdx)
    A('s_mov_b64 s[58:59], vcc')
    A('s_not_b64 s[%d:%d], vcc' % (sMK, sMK + 1))
    A('s_cmp_eq_u32 s%d, 0' % sJ)
    A('s_cselect_b32 s%d, s%d, 0' % (sMK, sMK))
    A('s_cselect_b32 s%d, 0, s%d' % (sMK + 1, sMK + 1))
    A('s_cselect_b32 s%d, -1, 0' % sJM)
    A('s_cselect_b32 s%d, 0, -1' % (sJM + 1))
    A('s_lshl_b32 s3, s%d, 10' % sW)
    A('v_add_u32 v%d, s3, v%d' % (vStgW, vL16))
    A('s_mul_i32 s60, s%d, 5120' % sJ)
    A('s_sub_u32 s61, %d, s60' % (MEMR_OFF + 5120))
    A('v_add_u32 v%d, s61, v%d' % (vPollR, vStgW))
    A('s_lshl_b32 s3, s%d, 8' % sW)
    A('v_lshlrev_b32 v62, 2, v%d' % lane)
    A('v_add_u32 v%d, s3, v62' % vPollX)
    A('v_lshrrev_b32 v62, 2, v%d' % C)
    A('v_lshlrev_b32 v62, 8, v62')
    A('v_lshl_add_u32 v62, v%d, 6, v62' % G)
    A('v_and_b32 v63, 3, v%d' % C)
    A('v_lshl_add_u32 v62, v63, 1, v62')
    A('s_lshl_b32 s3, s%d, 10' % sW)
    A('s_add_u32 s3, s3, %d' % L_X)
    A('v_add_u32 v%d, s3, v62' % vXW)
    A('s_lshl_b32 s3, s%d, 11' % sW)
    A('s_add_u32 s3, s3, %d' % L_V)
    A('v_add_u32 v%d, s3, v%d' % (vVR, vL16))
    A('v_lshlrev_b32 v62, 4, v%d' % C)
    A('v_lshl_add_u32 v62, v%d, 2, v62' % G)
    A('s_lshl_b32 s3, s%d, 9' % sW)
    A('s_add_u32 s3, s3, %d' % (L_R - 32))
    A('v_add_u32 v63, s3, v62')
    A('v_add_u32 v64, %d, v62' % L_DUMMY)
    A('v_cndmask_b32 v%d, v64, v63, s[58:59]' % vOW)
    A('s_mul_i32 s3, s%d, %d' % (sW, 20 * PART_CH))
    A('s_lshl_b32 s62, s%d, 7' % sH)
    A('s_add_u32 s3, s3, s62')
    A('v_mul_u32_u24 v62, %d, v%d' % (PART_CH, G))
    A('v_lshl_add_u32 v62, v%d, 3, v62' % C)
    A('v_add_u32 v%d, s3, v62' % vPW)
    A('s_lshl_b32 s63, s%d, 5' % sW)
    A('s_add_u32 s63, s63, s%d' % sH)
    A('s_cmp_lt_u32 s63, 80')
    A('s_cselect_b32 s%d, 1, 0' % sRedF)
    A('s_mul_i32 s3, s63, %d' % PART_CH)
    A('v_add_u32 v%d, s3, v%d' % (vRed, vL16))
    A('v_lshrrev_b32 v62, 5, v%d' % lane)
    A('v_and_b32 v63, 1, v%d' % lane)
    A('v_lshl_add_u32 v64, v63, 1, v62')
    A('v_lshlrev_b32 v64, 4, v64')
    A('s_lshl_b32 s3, s63, 6')
    A('s_add_u32 s3, s3, s60')
    A('s_add_u32 s3, s3, 10240')
    A('v_add_u32 v%d, s3, v64' % vPubL)
    A('v_add_u32 v%d, %d, v%d' % (vPubR, MEMR_OFF, vPubL))
    A('v_bfe_u32 v63, v%d, 1, 2' % lane)
    A('v_lshl_add_u32 v67, v63, 2, v%d' % vPubL)
    A('s_and_b32 s3, s63, 3')
    A('s_mul_i32 s3, s3, 2560')
    A('s_lshr_b32 s64, s63, 2')
    A('s_lshl_b32 s64, s64, 5')
    A('s_add_u32 s3, s3, s64')
    A('s_mul_i32 s64, s%d, 640' % sJ)
    A('s_add_u32 s3, s3, s64')
    A('v_mul_u32_u24 v65, 1280, v62')
    A('v_and_b32 v63, 7, v%d' % lane)
    A('v_lshl_add_u32 v65, v63, 2, v65')
    A('v_add_u32 v65, s3, v65')
    A('v_lshrrev_b32 v62, 2, v%d' % C)
    A('v_and_b32 v63, 1, v%d' % C)
    A('v_lshl_add_u32 v62, v62, 1, v63')
    A('v_lshlrev_b32 v62, 4, v62')
    A('v_lshl_add_u32 v62, v%d, 7, v62' % G)
    A('s_lshl_b32 s3, s%d, 9' % sW)
    A('s_lshl_b32 s64, s%d, 11' % sH)
    A('s_add_u32 s3, s3, s64')
    A('v_add_u32 v%d, s3, v62' % vKMP)
    A('s_add_u32 s43, s64, %d' % (WS_VM - WS_KM))
    A('s_cmp_lg_u32 s%d, 3' % sW)
    A('s_cbranch_scc1 L_not3a')
    A('s_add_u32 s3, s60, 2048')
    A('v_add_u32 v%d, s3, v%d' % (vRed, vL16))
    A('v_lshlrev_b32 v%d, 7, v%d' % (vPubL, lane))
    A('v_min_u32 v62, 39, v%d' % lane)
    A('v_lshlrev_b32 v62, 7, v62')
    A('s_add_u32 s3, s60, 10240')
    A('v_add_u32 v%d, s3, v62' % vPubR)
    A.label('L_not3a')
    A('s_add_u32 s98, s60, 2048')
    A('s_lshl_b32 s3, s%d, 14' % sH)
    A('s_lshl_b32 s%d, s%d, 12' % (sM0KV, sW))
    A('s_add_u32 s3, s3, s%d' % sM0KV)
    A('s_add_u32 s%d, s4, s3' % sKV)
    A('s_addc_u32 s%d, s5, 0' % (sKV + 1))
    A('s_add_u32 s%d, s4, %d' % (sMEM, WS_MEML - 10240))
    A('s_addc_u32 s%d, s5, 0' % (sMEM + 1))
    A('s_add_u32 s%d, s4, %d' % (sPUB, WS_KM))
    A('s_addc_u32 s%d, s5, 0' % (sPUB + 1))
    A('s_mul_i32 s3, s%d, %d' % (sJ, PART_J))
    A('s_add_u32 s3, s3, %d' % WS_PART)
    A('s_add_u32 s8, s4, s3')
    A('s_addc_u32 s9, s5, 0')
    A('s_mov_b32 s10, 0x%x' % (PART_SLOT + PART_J))
    A('s_mov_b32 s11, 0x20000')
    A('s_mov_b32 s%d, 0x3' % sM1)
    A('s_mov_b32 s%d, 0x3' % (sM1 + 1))
    A('s_mov_b32 s%d, 0x%08x' % (sScale, f32bits((128 ** -0.5) * math.log2(math.e))))
    A('s_mov_b32 s%d, 0x%08x' % (sSent, SENT_F32))
    A('s_mov_b32 s%d, 0' % sStep)
    A('s_mov_b32 s99, 51200')
    A('s_mov_b32 s%d, 0' % sSlot)
    for k in range(16):
        A('s_mov_b32 s%d, 0' % (sAcc + k))

    def dma_kv():
        A('s_mov_b32 m0, s%d' % sM0KV)
        for i in range(4):
            A('global_load_lds_dwordx4 v%d, s[%d:%d] offset:%d sc1' % (vL16, sKV, sKV + 1, i * 1024))
        A('s_add_u32 s%d, s%d, %d' % (sKV, sKV, 32 * 16384))
        A('s_addc_u32 s%d, s%d, 0' % (sKV + 1, sKV + 1))

    A('s_cmp_eq_u32 s%d, 0' % sRedF)
    A('s_cbranch_scc1 L_init_done')
    A('global_load_dword v66, v65, s[56:57]')
    for i in range(4):
        A('v_mov_b32 v%d, s%d' % (68 + i, sSent))
        A('v_mov_b32 v%d, -1' % (72 + i))
    A('s_mov_b32 s3, %d' % PART_SLOT)
    for i in range(4):
        A('buffer_store_dwordx4 v[68:71], v%d, s[8:11], 0 offen offset:%d sc1' % (vRed, i * 1024))
        A('buffer_store_dwordx4 v[68:71], v%d, s[8:11], s3 offen offset:%d sc1' % (vRed, i * 1024))
    A('v_mul_u32_u24 v62, 10240, v%d' % lane)
    A('s_lshl_b32 s3, s63, 6')
    A('s_add_u32 s3, s3, s60')
    A('s_add_u32 s3, s3, 20480')
    A('v_add_u32 v62, s3, v62')
    A('v_add_u32 v63, %d, v62' % MEMR_OFF)
    for i in range(4):
        A('global_store_dwordx4 v62, v[72:75], s[%d:%d] offset:%d sc1' % (sMEM, sMEM + 1, i * 16))
        A('global_store_dwordx4 v63, v[72:75], s[%d:%d] offset:%d sc1' % (sMEM, sMEM + 1, i * 16))
    A('s_waitcnt vmcnt(16)')
    A('v_min_u32 v66, -2, v66')
    A('v_add_u32 v64, %d, v67' % MEMR_OFF)
    A('s_mov_b32 exec_lo, 0xff')
    A('s_mov_b32 exec_hi, 0xff')
    A('global_store_dword v67, v66, s[%d:%d] sc1' % (sMEM, sMEM + 1))
    A('global_store_dword v64, v66, s[%d:%d] sc1' % (sMEM, sMEM + 1))
    A('s_mov_b64 exec, -1')
    A.label('L_init_done')
    A('s_waitcnt vmcnt(0)')
    A('s_barrier')
    A('s_cmp_lg_u32 s%d, 0' % sW)
    A('s_cbranch_scc1 L_arr_done')
    A('v_mov_b32 v62, 128')
    A('v_mov_b32 v63, 1')
    A('s_mov_b64 exec, 1')
    A('global_atomic_add v62, v63, s[6:7]')
    A('s_mov_b64 exec, -1')
    A.label('L_arr_done')
    A('s_add_u32 s%d, s%d, 10240' % (sMEM, sMEM))
    A('s_addc_u32 s%d, s%d, 0' % (sMEM + 1, sMEM + 1))
    dma_kv()

    vm = Q(A, 'vmcnt', 63)
    A('v_readfirstlane_b32 s68, v%d' % vWl)
    ln = 40
    A('v_lshrrev_b32 v%d, 4, v%d' % (ln, vL16))
    for n in range(5):
        A('v_add_u32 v50, %d, v%d' % (64 * n, ln))
        A('v_mul_u32_u24 v51, 6554, v50')
        A('v_lshrrev_b32 v51, 16, v51')
        A('v_mul_u32_u24 v52, 10, v51')
        A('v_sub_u32 v52, v50, v52')
        A('v_mul_u32_u24 v51, 1280, v51')
        A('v_lshl_add_u32 v%d, v52, 4, v51' % (41 + n))
    A('v_lshrrev_b32 v50, 4, v%d' % ln)
    A('v_bfe_u32 v51, v%d, 2, 2' % ln)
    A('v_lshl_add_u32 v51, v50, 3, v51')
    A('v_and_b32 v52, 3, v%d' % ln)
    A('v_lshlrev_b32 v52, 3, v52')
    A('v_add_u32 v52, s68, v52')
    A('v_mul_u32_u24 v46, 160, v51')
    A('v_add_u32 v46, v46, v52')
    A('v_lshl_add_u32 v47, v51, 6, v52')
    A('v_and_b32 v50, 1, v50')
    A('v_xor_b32 v53, 1, v50')
    A('v_lshl_add_u32 v48, v53, 5, v47')
    A('v_lshl_add_u32 v47, v50, 5, v47')
    A('v_lshrrev_b32 v50, 2, v%d' % ln)
    A('v_lshlrev_b32 v49, 13, v50')
    A('v_lshrrev_b32 v50, 1, v%d' % ln)
    A('v_lshrrev_b32 v51, 5, v%d' % ln)
    A('v_xor_b32 v50, v50, v51')
    A('v_and_b32 v50, 1, v50')
    A('v_lshl_add_u32 v49, v50, 5, v49')
    A('v_and_b32 v50, 1, v%d' % ln)
    A('v_lshl_add_u32 v49, v50, 4, v49')
    A('s_lshl_b32 s3, s%d, 8' % sH)
    A('s_lshl_b32 s64, s%d, 6' % sW)
    A('s_add_u32 s3, s3, s64')
    for mt in range(3):
        A('s_add_u32 s%d, s%d, s3' % (44 + 2 * mt, 44 + 2 * mt))
        A('s_addc_u32 s%d, s%d, 0' % (45 + 2 * mt, 45 + 2 * mt))
    A('s_mul_i32 s3, s%d, 163840' % sH)
    A('s_mul_i32 s64, s%d, 640' % sJ)
    A('s_add_u32 s3, s3, s64')
    A('s_mul_i32 s64, s%d, 160' % sW)
    A('s_add_u32 s3, s3, s64')
    A('s_add_u32 s50, s50, s3')
    A('s_addc_u32 s51, s51, 0')
    A('s_mul_i32 s52, s%d, %d' % (sJ, 320 * 8192))
    A('s_sub_u32 s53, %d, s52' % (320 * 8192))
    for pc in range(4):
        for n in range(5):
            A('s_add_u32 m0, s68, %d' % (pc * 5120 + n * 1024))
            vm.issue('global_load_lds_dwordx4 v%d, s[50:51]' % (41 + n), ('wo', pc))
        A('s_add_u32 s50, s50, %d' % (32 * 1280))
        A('s_addc_u32 s51, s51, 0')
    chunks = [(hf, ks, mt) for hf in 'RL' for ks in range(5) for mt in range(3) if (hf, ks, 2 * mt) in REGF]
    lch = [(f[0], f[1], f[2] // 2) for f in LDSF[::2]]
    assert len(chunks) == 22 and len(lch) == 8
    slots = [(5 + i) % 8 for i in range(30)]
    tail = slots[22:]
    chunks = chunks + [lch[sl] for sl in tail]

    def cdma(i):
        hf, ks, mt = chunks[i]
        A('s_add_u32 s3, s%d, %d' % (52 if hf == 'L' else 53, ks * 64 * 8192))
        A('s_add_u32 s66, s%d, s3' % (44 + 2 * mt))
        A('s_addc_u32 s67, s%d, 0' % (45 + 2 * mt))
        for n in range(4):
            A('s_add_u32 m0, s68, %d' % (slots[i] * 4096 + n * 1024))
            vm.issue('global_load_lds_dwordx4 v49, s[66:67]', ('c', i))
            if n < 3:
                A('s_add_u32 s66, s66, %d' % (16 * 8192))
                A('s_addc_u32 s67, s67, 0')
    for i in range(3):
        cdma(i)
    for pc in range(4):
        vm.wait(('wo', pc))
        for t in range(5):
            for q4 in range(2):
                lg.issue('ds_read_b64_tr_b16 %s, v46 offset:%d' % (wreg(('O', pc >> 1, t), 4 * (pc & 1) + 2 * q4, 2), pc * 5120 + q4 * 640 + t * 32))
    lg.waitall()
    for i in range(3, 8):
        cdma(i)
    for i in range(30):
        hf, ks, mt = chunks[i]
        vm.wait(('c', i))
        for tp in range(2):
            for q in range(4):
                off = slots[i] * 4096 + (q >> 1) * 2048 + (q & 1) * 256
                if i < 22:
                    dst = wreg((hf, ks, 2 * mt + tp), 2 * q, 2)
                else:
                    dst = v(ACC + 8 * tp + 2 * q, 2)
                lg.issue('ds_read_b64_tr_b16 %s, v%d offset:%d' % (dst, 47 + tp, off), ('r', i))
        if i >= 22:
            lg.waitall()
            for q in range(4):
                lg.issue('ds_write_b128 v%d, %s offset:%d' % (vWl, v(ACC + 4 * q, 4), slots[i] * 4096 + q * 1024))
        if i >= 1 and i + 7 < 30:
            lg.wait(('r', i - 1))
            cdma(i + 7)
    A('s_waitcnt vmcnt(0) lgkmcnt(0)')
    lg.q = []
    A('s_memrealtime s[72:73]')
    A('s_waitcnt lgkmcnt(0)')
    A('s_sub_u32 s72, s72, s70')
    A('s_mul_i32 s%d, s72, 63' % (sAcc + 10))
    A('s_mov_b32 s%d, 0x40000' % sCnt)
    A('v_mov_b32 v62, 128')
    A.label('L_wait64')
    A('global_load_dword v63, v62, s[6:7] sc1')
    A('s_waitcnt vmcnt(0)')
    A('v_readfirstlane_b32 s3, v63')
    A('s_cmp_ge_u32 s3, 64')
    A('s_cbranch_scc1 L_wait64_done')
    A('s_sleep 4')
    A('s_sub_u32 s%d, s%d, 1' % (sCnt, sCnt))
    A('s_cmp_gt_i32 s%d, 0' % sCnt)
    A('s_cbranch_scc1 L_wait64')
    A('s_branch L_abort')
    A.label('L_wait64_done')
    A('s_barrier')
    if stamps:
        A('s_memtime s[%d:%d]' % (sTS, sTS + 1))
        A('s_waitcnt lgkmcnt(0)')
        A('s_mov_b32 s%d, s%d' % (sPrev, sTS))
    A('s_cmp_eq_u32 s%d, 3' % sW)
    A('s_cbranch_scc1 L_loop_w3')
    A('s_cmp_eq_u32 s%d, 0' % sRedF)
    A('s_cbranch_scc1 L_loop_nr')
    A('s_branch L_loop_red')

    def smf(acc_t, areg, breg):
        A('v_smfmac_f32_16x16x64_bf16 %s, %s, %s, v%d' % (v(acc_t, 4), v(areg, 4), breg, vIdx))

    def mf32(d, aa, bb, c):
        A('v_mfma_f32_16x16x32_bf16 %s, %s, %s, %s' % (v(d, 4), v(aa, 4), v(bb, 4), c))

    def ldsfrag(buf, f):
        li = LDSF.index(f)
        lg.issue('ds_read_b128 %s, v%d offset:%d' % (v(TB[buf], 4), vWl, li * 2048), None)
        lg.issue('ds_read_b128 %s, v%d offset:%d' % (v(TB[buf] + 4, 4), vWl, li * 2048 + 1024), ('tb', buf))

    def timeout():
        A('s_sub_u32 s%d, s%d, 1' % (sCnt, sCnt))
        A('s_cbranch_scc1 L_abort')

    def body(role):
        n = role
        lg.q = []
        A('.p2align 6')
        A.label('L_loop_' + n)
        A('s_add_u32 s92, s%d, s61' % sMEM)
        A('s_addc_u32 s93, s%d, 0' % (sMEM + 1))
        A('s_add_u32 s92, s92, 4096')
        A('s_addc_u32 s93, s93, 0')
        A('s_add_u32 s96, s%d, s98' % sMEM)
        A('s_addc_u32 s97, s%d, 0' % (sMEM + 1))
        for i in range(12):
            A('v_mov_b64 %s, 0' % v(ACC + 2 * i, 2))
        lorder = [f for ks in range(5) for f in [('L', ks, 2), ('L', ks, 0), ('L', ks, 4), ('L', ks, 3), ('L', ks, 1), ('L', ks, 5)]]
        lq = [f for f in lorder if f in LDSF]
        ldsfrag(0, lq[0])
        ldsfrag(1, lq[1])
        stamp(0)

        def rpoll():
            A('global_load_dwordx4 %s, v%d, s[%d:%d] sc1' % (v(SP, 4), vPollR, sMEM, sMEM + 1))
            A('global_load_dword v%d, v%d, s[92:93] sc1' % (vT1, vPollX))
        A('s_mov_b32 s%d, 0x40000' % sCnt)
        if P['lsleep']:
            A('s_sleep %d' % P['lsleep'])
        A.label('L_Lp_' + n)
        for ks in range(5):
            A('global_load_dwordx4 %s, v%d, s[96:97] offset:%d sc1' % (v(AF + 4 * ks, 4), vL16, ks * 1024 - 2048))
        A.label('L_Lbar_' + n)
        A('s_barrier')
        base = 6
        if 'dpub' in opt:
            base = 4
            if role == 'red':
                base = 5
                A('s_sub_u32 s94, s%d, s99' % sMEM)
                A('s_subb_u32 s95, s%d, 0' % (sMEM + 1))
                A('s_mov_b64 exec, s[%d:%d]' % (sM1, sM1 + 1))
                A('global_store_dwordx4 v%d, %s, s[94:95] sc1' % (vPubR, v(SP, 4)))
                A('s_mov_b64 exec, -1')
                A('s_mov_b32 s99, 10240')
        A.label('L_Lnobar_' + n)
        if 'dpub' not in opt:
            rpoll()
        count(13)
        nb = 0
        nxt = 2
        lastks = -1
        extra = 0
        for f in lorder:
            _, ks, tt = f
            if ks != lastks:
                A('s_waitcnt vmcnt(%d)' % (base - ks + extra))
                lastks = ks
                if ks == 0:
                    stamp(1)
            if f in LDSF:
                lg.wait(('tb', nb))
                smf(ACC + 4 * tt, AF + 4 * ks, v(TB[nb], 8))
                if nxt < len(lq):
                    ldsfrag(nb, lq[nxt])
                    nxt += 1
                nb ^= 1
            else:
                smf(ACC + 4 * tt, AF + 4 * ks, wreg(f))
            if tt == 5 and (P.get('rmask', 0) >> ks) & 1:
                rpoll()
                extra += 2
        A('v_cmp_u_f32 vcc, v%d, v%d' % (ACC, ACC + 1))
        A('v_cmp_u_f32 s[58:59], v%d, v%d' % (ACC + 2, ACC + 3))
        A('s_or_b64 vcc, vcc, s[58:59]')
        A('s_cbranch_scc1 L_Lredo_' + n)
        A.label('L_Lok_' + n)
        KF = {(0, 0): TB[0], (1, 0): TB[0] + 4, (0, 1): TB[1], (1, 1): TB[1] + 4,
              (0, 2): AF + 0, (1, 2): AF + 4, (0, 3): AF + 8, (1, 3): SP}

        def kread(rt, ks):
            lg.issue('ds_read_b128 %s, v%d offset:%d' % (v(KF[(rt, ks)], 4), vL16, L_K + (rt * 4 + ks) * 1024), ('K', rt, ks))
        for ks in range(2):
            kread(0, ks)
            kread(1, ks)
        stamp(2)
        A('s_mov_b32 s%d, 0x40000' % sCnt)
        A('s_branch L_Rchk_' + n)
        A.label('L_Rp_' + n)
        rpoll()
        count(14)
        timeout()
        A.label('L_Rchk_' + n)
        A('s_waitcnt vmcnt(0)')
        A('v_max3_u32 v%d, v%d, v%d, v%d' % (vT0, SP, SP + 1, SP + 2))
        A('ds_write_b128 v%d, %s offset:%d' % (vStgW, v(SP, 4), L_R))
        A('v_max3_u32 v%d, v%d, v%d, v%d' % (vT0, vT0, SP + 3, vT1))
        A('ds_write_b32 v%d, v%d offset:%d' % (vPollX, vT1, L_R + 4096))
        A('v_cmp_eq_u32 vcc, -1, v%d' % vT0)
        A('s_cbranch_vccnz L_Rp_' + n)
        lg.waitall()
        A('s_barrier')
        for ks in range(5):
            lg.issue('ds_read_b128 %s, v%d offset:%d' % (v(AF + 4 * ks, 4), vL16, L_R + ks * 1024), ('A', ks))
        if role == 'red':
            A('s_sub_u32 s3, %d, s%d' % (PART_SLOT, sSlot))
            for i in range(4):
                A('v_mov_b32 v%d, s%d' % (SP + i, sSent))
        stamp(3)

        def post(tt, rbase, toff):
            r = ACC + 4 * tt
            A('v_pk_add_f32 %s, %s, %s' % (v(r, 2), v(r, 2), v(r + 2, 2)))
            A('v_cvt_pk_bf16_f32 v%d, v%d, v%d' % (r, r, r + 1))
            lg.issue('ds_write_b16 v%d, v%d offset:%d' % (vXW, r, toff + rbase * 16))
            lg.issue('ds_write_b16_d16_hi v%d, v%d offset:%d' % (vXW, r, toff + (rbase + 1) * 16), 'xw')
        posts = {0: (0, 2, 0), 1: (1, 2, 8), 2: (2, 0, 0), 3: (3, 0, 8)}
        hk = []
        if role == 'red':
            hk = ['buffer_store_dwordx4 %s, v%d, s[8:11], s3 offen offset:%d%s' % (v(SP, 4), vRed, i * 1024, LOC) for i in range(4)]
        elif role == 'w3':
            hk = ['s_mov_b32 m0, %d\nglobal_load_lds_dword v%d, s[%d:%d] sc1' % (L_DUMMY + 1024, vPubR, sMEM, sMEM + 1),
                  's_add_u32 s94, s%d, 0x%x\ns_addc_u32 s95, s%d, -1\nglobal_load_lds_dword v%d, s[94:95] sc1' % (sKV, (1 << 32) - 12288, sKV + 1, vPubL),
                  's_add_u32 s94, s94, 8192\ns_addc_u32 s95, s95, 0\nglobal_load_lds_dword v%d, s[94:95] sc1' % vPubL]
            if 'nowarmR' not in opt:
                hk.append('s_sub_u32 s94, s%d, s60\ns_subb_u32 s95, s%d, 0\ns_add_u32 s94, s94, s61\ns_addc_u32 s95, s95, 0\nglobal_load_lds_dword v%d, s[94:95] sc1' % (sMEM, sMEM + 1, vPubR))
        if 'notouch' in opt and role == 'w3':
            hk = []
        for tt in range(4):
            for ks in range(5):
                lg.wait(('A', ks))
                smf(ACC + 4 * tt, AF + 4 * ks, wreg(('R', ks, tt)))
                if ks == 3 and tt > 0:
                    post(*posts[tt - 1])
                if ks == 1 and tt < len(hk):
                    A(hk[tt])
        smf(ACC + 16, AF + 0, wreg(('R', 0, 4)))
        smf(ACC + 20, AF + 0, wreg(('R', 0, 5)))
        post(*posts[3])
        smf(ACC + 16, AF + 4, wreg(('R', 1, 4)))
        smf(ACC + 20, AF + 4, wreg(('R', 1, 5)))
        lg.waitall()
        A('s_barrier')
        stamp(4)
        XF = ACC
        for ks in range(4):
            lg.issue('ds_read_b128 %s, v%d offset:%d' % (v(XF + 4 * ks, 4), vL16, L_X + ks * 1024), ('X', ks))
        smf(ACC + 16, AF + 8, wreg(('R', 2, 4)))
        smf(ACC + 20, AF + 8, wreg(('R', 2, 5)))
        for ks in (2, 3):
            kread(0, ks)
            kread(1, ks)
        for ks in (3, 4):
            smf(ACC + 16, AF + 4 * ks, wreg(('R', ks, 4)))
            smf(ACC + 20, AF + 4 * ks, wreg(('R', ks, 5)))
        S0, S1, SM = AF + 12, AF + 16, TB[0]
        lg.wait(('X', 0))
        mf32(S0, KF[(0, 0)], XF, '0')
        mf32(S1, KF[(1, 0)], XF, '0')
        mf32(SM, XF, XF, '0')
        lg.wait(('X', 1))
        mf32(S0, KF[(0, 1)], XF + 4, v(S0, 4))
        mf32(S1, KF[(1, 1)], XF + 4, v(S1, 4))
        mf32(SM, XF + 4, XF + 4, v(SM, 4))
        VT = TB[1]
        lg.wait(('X', 3))
        mf32(SM, XF + 8, XF + 8, v(SM, 4))
        mf32(SM, XF + 12, XF + 12, v(SM, 4))
        lg.wait(('K', 1, 3))
        for tp in range(2):
            lg.issue('ds_read_b128 %s, v%d offset:%d' % (v(VT + 4 * tp, 4), vVR, tp * 1024), ('VT', tp))
        mf32(S0, KF[(0, 2)], XF + 8, v(S0, 4))
        VM0, VM1 = ACC + 16, ACC + 20
        A('v_pk_add_f32 %s, %s, %s' % (v(VM0, 2), v(VM0, 2), v(VM0 + 2, 2)))
        A('v_pk_add_f32 %s, %s, %s' % (v(VM1, 2), v(VM1, 2), v(VM1 + 2, 2)))
        mf32(S0, KF[(0, 3)], XF + 12, v(S0, 4))
        A('v_cvt_pk_bf16_f32 v%d, v%d, v%d' % (VM0, VM0, VM0 + 1))
        A('v_cvt_pk_bf16_f32 v%d, v%d, v%d' % (VM1, VM1, VM1 + 1))
        mf32(S1, KF[(1, 2)], XF + 8, v(S1, 4))
        A('v_mov_b32 v%d, 0' % (VM0 + 1))
        A('v_mov_b64 %s, 0' % v(VM0 + 2, 2))
        mf32(S1, KF[(1, 3)], XF + 12, v(S1, 4))
        lg.issue('ds_read_b128 %s, v%d offset:%d' % (v(SP, 4), vStgW, L_X), 'KMP')
        A('v_mov_b32 v%d, 0' % (VM1 + 1))
        A('v_mov_b64 %s, 0' % v(VM1 + 2, 2))
        ONES = TB[0] + 4
        PB, PM = AF + 0, AF + 4
        A('v_mov_b32 v%d, 0x3f803f80' % ONES)
        A('v_mov_b32 v%d, 0x3f803f80' % (ONES + 1))
        stamp(5)
        vals = [SM, SM + 1, S0, S0 + 1, S0 + 2, S0 + 3, S1, S1 + 1, S1 + 2, S1 + 3]
        A('v_max3_f32 v%d, v%d, v%d, v%d' % (vT0, SM, SM + 1, S0))
        A('v_max3_f32 v%d, v%d, v%d, v%d' % (vT0, vT0, S0 + 1, S0 + 2))
        A('v_mov_b64 %s, %s' % (v(ONES + 2, 2), v(ONES, 2)))
        A('v_max3_f32 v%d, v%d, v%d, v%d' % (vT1, S0 + 3, S1, S1 + 1))
        A('v_max3_f32 v%d, v%d, v%d, v%d' % (vT0, vT0, S1 + 2, S1 + 3))
        A('v_max_f32 v%d, v%d, v%d' % (vT0, vT0, vT1))
        A('v_max_f32 v%d, v%d, v%d' % (vT1, vT0, vT1))
        A('v_mov_b32 v%d, 0' % (PM + 1))
        A('v_mov_b64 %s, 0' % v(PM + 2, 2))
        A('v_permlane32_swap_b32 v%d, v%d' % (vT0, vT1))
        A('v_max_f32 v%d, v%d, v%d' % (vT0, vT0, vT1))
        A('v_max_f32 v%d, v%d, v%d' % (vT1, vT0, vT1))
        A('v_mov_b32 v%d, v%d' % (AF + 8, VM0))
        A('v_mov_b32 v%d, v%d' % (AF + 9, VM1))
        A('v_permlane16_swap_b32 v%d, v%d' % (vT0, vT1))
        A('v_max_f32 v%d, v%d, v%d' % (vT0, vT0, vT1))
        A('v_mul_f32 v%d, s%d, v%d' % (vT0, sScale, vT0))
        for r in vals:
            A('v_fma_f32 v%d, v%d, s%d, -v%d' % (r, r, sScale, vT0))
        for r in vals:
            A('v_exp_f32 v%d, v%d' % (r, r))
        A('v_cvt_pk_bf16_f32 v%d, v%d, v%d' % (PM, SM, SM + 1))
        A('v_cvt_pk_bf16_f32 v%d, v%d, v%d' % (PB, S0, S0 + 1))
        A('v_cvt_pk_bf16_f32 v%d, v%d, v%d' % (PB + 1, S0 + 2, S0 + 3))
        LS, O0, O1 = TB[0], AF + 12, AF + 16
        lg.waitall()
        mf32(LS, ONES, PM, '0')
        A('v_cvt_pk_bf16_f32 v%d, v%d, v%d' % (PB + 2, S1, S1 + 1))
        A('v_cvt_pk_bf16_f32 v%d, v%d, v%d' % (PB + 3, S1 + 2, S1 + 3))
        stamp(6)
        mf32(O0, VM0, PM, '0')
        mf32(LS, ONES, PB, v(LS, 4))
        mf32(O1, VM1, PM, '0')
        mf32(O0, VT, PB, v(O0, 4))
        mf32(O1, VT + 4, PB, v(O1, 4))
        if 'nopub' not in opt:
            A('s_add_u32 s94, s%d, s43' % sPUB)
            A('s_addc_u32 s95, s%d, 0' % (sPUB + 1))
            A('v_lshlrev_b32 v%d, 1, v%d' % (AF + 10, vPollX))
            A('s_mov_b64 exec, s[%d:%d]' % (sJM, sJM + 1))
            A('global_store_dwordx2 v%d, %s, s[94:95] sc1' % (AF + 10, v(AF + 8, 2)))
            A('s_mov_b64 exec, s[%d:%d]' % (sMK, sMK + 1))
            A('global_store_dwordx4 v%d, %s, s[%d:%d] sc1' % (vKMP, v(SP, 4), sPUB, sPUB + 1))
            A('s_mov_b64 exec, -1')
        A('v_rcp_f32 v%d, v%d' % (vT0, LS))
        A('s_cmp_eq_u32 s%d, %d' % (sStep, nsteps - 1))
        A('s_cbranch_scc1 L_end')
        for O in (O0, O1):
            A('v_pk_mul_f32 %s, %s, %s op_sel_hi:[1,0]' % (v(O, 2), v(O, 2), v(vT0, 2)))
            A('v_pk_mul_f32 %s, %s, %s op_sel_hi:[1,0]' % (v(O + 2, 2), v(O + 2, 2), v(vT0, 2)))
            A('v_cvt_pk_bf16_f32 v%d, v%d, v%d' % (O, O, O + 1))
            A('v_cvt_pk_bf16_f32 v%d, v%d, v%d' % (O + 1, O + 2, O + 3))
            tp = 0 if O == O0 else 1
            lg.issue('ds_write2_b32 v%d, v%d, v%d offset0:%d offset1:%d' % (vOW, O, O + 1, tp * 64, tp * 64 + 8))
        OA = [ACC, ACC + 4, ACC + 8, ACC + 12, ACC + 16]
        for r in OA:
            A('v_mov_b64 %s, 0' % v(r, 2))
            A('v_mov_b64 %s, 0' % v(r + 2, 2))
        lg.waitall()
        A('s_barrier')
        stamp(7)
        OF = TB[1]
        lg.issue('ds_read_b128 %s, v%d offset:%d' % (v(OF, 4), vL16, L_R), ('O', 0))
        lg.issue('ds_read_b128 %s, v%d offset:%d' % (v(OF + 4, 4), vL16, L_R + 1024), ('O', 1))
        if 'nodma' not in opt:
            dma_kv()
        for t in range(5):
            A('s_add_u32 s%d, s%d, %d' % (sSO + t, sSlot, t * 4 * PART_CH))
        lg.wait(('O', 0))
        for t in range(5):
            smf(OA[t], OF, wreg(('O', 0, t)))
        lg.waitall()

        def pst(u):
            A('v_pk_add_f32 %s, %s, %s' % (v(OA[u], 2), v(OA[u], 2), v(OA[u] + 2, 2)))
            A('buffer_store_dwordx2 %s, v%d, s[8:11], s%d offen%s' % (v(OA[u], 2), vPW, sSO + u, LOC))
        for t in range(5):
            smf(OA[t], OF + 4, wreg(('O', 1, t)))
            if t >= 3:
                pst(t - 3)
        for u in (2, 3, 4):
            pst(u)
        stamp(8)
        if role == 'red':
            RS = [AF, TB[0]]
            Y = SP
            A('s_mov_b32 s%d, 0x4000' % sCnt)
            A('v_mov_b32 v%d, -2' % vT1)

            def rissue(k):
                for i in range(4):
                    A('buffer_load_dwordx4 %s, v%d, s[8:11], s%d offen offset:%d sc1' % (v(RS[k] + 4 * i, 4), vRed, sSlot, i * 1024))

            def rsum(k, infl):
                R = RS[k]
                A('s_waitcnt vmcnt(%d)' % (infl + 2))
                A('v_pk_add_f32 %s, %s, %s' % (v(Y, 2), v(R, 2), v(R + 4, 2)))
                A('v_pk_add_f32 %s, %s, %s' % (v(Y + 2, 2), v(R + 2, 2), v(R + 6, 2)))
                A('s_waitcnt vmcnt(%d)' % (infl + 1))
                A('v_pk_add_f32 %s, %s, %s' % (v(Y, 2), v(Y, 2), v(R + 8, 2)))
                A('v_pk_add_f32 %s, %s, %s' % (v(Y + 2, 2), v(Y + 2, 2), v(R + 10, 2)))
                A('s_waitcnt vmcnt(%d)' % infl)
                A('v_pk_add_f32 %s, %s, %s' % (v(Y, 2), v(Y, 2), v(R + 12, 2)))
                A('v_pk_add_f32 %s, %s, %s' % (v(Y + 2, 2), v(Y + 2, 2), v(R + 14, 2)))
                A('v_permlane32_swap_b32 v%d, v%d' % (Y, Y + 1))
                A('v_permlane32_swap_b32 v%d, v%d' % (Y + 2, Y + 3))
                A('v_add_f32 v%d, v%d, v%d' % (Y, Y, Y + 1))
                A('v_add_f32 v%d, v%d, v%d' % (Y + 2, Y + 2, Y + 3))
                A('v_cmp_u_f32 vcc, v%d, v%d' % (Y, Y + 2))
                A('v_mov_b32 v%d, v%d' % (Y + 1, Y))
                A('v_mov_b32 v%d, v%d' % (Y + 3, Y + 2))
            if 'rwait' in P:
                A('s_waitcnt vmcnt(%d)' % P['rwait'])
            if P.get('rpre', 0):
                A('s_sleep %d' % P['rpre'])
            rissue(0)
            if P['rgap']:
                A('s_sleep %d' % P['rgap'])
            A.label('L_red_p')
            rissue(1)
            count(15)
            rsum(0, 4)
            A('s_cbranch_vccz L_red_go')
            rissue(0)
            count(15)
            rsum(1, 4)
            A('s_cbranch_vccz L_red_go')
            A('s_sub_u32 s%d, s%d, 1' % (sCnt, sCnt))
            A('s_cbranch_scc1 L_abort')
            A('s_and_b32 s3, s%d, 15' % sCnt)
            A('s_cbranch_scc1 L_red_p')
            A('s_mov_b64 s[58:59], 0')
            for i in range(16):
                A('v_cmp_eq_u32 vcc, s%d, v%d' % (sSent, RS[1] + i))
                A('s_or_b64 s[58:59], s[58:59], vcc')
            A('s_cbranch_scc1 L_red_p')
            A.label('L_red_go')
            A('s_nop 0')
            A('v_permlane16_swap_b32 v%d, v%d' % (Y, Y + 1))
            A('v_permlane16_swap_b32 v%d, v%d' % (Y + 2, Y + 3))
            A('v_add_f32 v%d, v%d, v%d' % (Y, Y, Y + 1))
            A('v_add_f32 v%d, v%d, v%d' % (Y + 2, Y + 2, Y + 3))
            A('v_add_f32_dpp v%d, v%d, v%d row_ror:8 row_mask:0xf bank_mask:0xf' % (Y + 1, Y, Y))
            A('v_add_f32_dpp v%d, v%d, v%d row_ror:8 row_mask:0xf bank_mask:0xf' % (Y + 3, Y + 2, Y + 2))
            A('v_cvt_pk_bf16_f32 v%d, v%d, v%d' % (vT0, Y + 1, Y + 3))
            A('v_min_u32 v%d, v%d, v%d' % (Y, vT0, vT1))
            for i in (1, 2, 3):
                A('v_min_u32_dpp v%d, v%d, v%d row_shl:%d row_mask:0xf bank_mask:0xf' % (Y + i, vT0, vT1, 2 * i))
            A('s_mov_b64 exec, s[%d:%d]' % (sM1, sM1 + 1))
            A('global_store_dwordx4 v%d, %s, s[%d:%d]%s' % (vPubL, v(Y, 4), sMEM, sMEM + 1, LOC))
            stamp(11)
            if 'dpub' in opt:
                A('s_mov_b64 exec, -1')
                A('s_waitcnt vmcnt(1)')
                A('s_barrier')
            else:
                A('s_barrier')
                A('global_store_dwordx4 v%d, %s, s[%d:%d] sc1' % (vPubR, v(Y, 4), sMEM, sMEM + 1))
                A('s_mov_b64 exec, -1')
                A('s_waitcnt vmcnt(2)')
        else:
            A('s_waitcnt vmcnt(0)')
            A('s_barrier')
        stamp(9)
        A('s_add_u32 s%d, s%d, 10240' % (sMEM, sMEM))
        A('s_addc_u32 s%d, s%d, 0' % (sMEM + 1, sMEM + 1))
        A('s_add_u32 s%d, s%d, 65536' % (sPUB, sPUB))
        A('s_addc_u32 s%d, s%d, 0' % (sPUB + 1, sPUB + 1))
        A('s_sub_u32 s%d, %d, s%d' % (sSlot, PART_SLOT, sSlot))
        A('s_add_u32 s%d, s%d, 1' % (sStep, sStep))
        A('s_branch L_loop_' + n)
        A.label('L_Lredo_' + n)
        A('s_waitcnt vmcnt(0) lgkmcnt(0)')
        lg.q = []
        A('v_max3_u32 v%d, v%d, v%d, v%d' % (vT0, AF, AF + 1, AF + 2))
        for i in range(3, 19, 2):
            A('v_max3_u32 v%d, v%d, v%d, v%d' % (vT0, vT0, AF + i, AF + i + 1))
        A('v_max_u32 v%d, v%d, v%d' % (vT0, vT0, AF + 19))
        A('v_cmp_eq_u32 vcc, -1, v%d' % vT0)
        A('s_cbranch_vccz L_Lok_' + n)
        timeout()
        for i in range(12):
            A('v_mov_b64 %s, 0' % v(ACC + 2 * i, 2))
        ldsfrag(0, lq[0])
        ldsfrag(1, lq[1])
        for ks in range(5):
            A('global_load_dwordx4 %s, v%d, s[96:97] offset:%d sc1' % (v(AF + 4 * ks, 4), vL16, ks * 1024 - 2048))
        if 'dpub' in opt and role == 'red':
            A('global_load_dword v%d, v%d, s[96:97] sc1' % (vT0, vL16))
        A('s_branch L_Lnobar_' + n)
        A('s_waitcnt vmcnt(0) lgkmcnt(0)')

    body('red')
    body('nr')
    body('w3')

    A.label('L_abort')
    A('s_waitcnt vmcnt(0)')
    A('v_mov_b32 v62, 192')
    A('v_mov_b32 v63, 1')
    A('s_mov_b64 exec, 1')
    A('global_atomic_add v62, v63, s[6:7]')
    A('s_endpgm')

    A.label('L_end')
    if True:
        A('s_memrealtime s[72:73]')
        A('s_waitcnt lgkmcnt(0)')
        A('s_sub_u32 s72, s72, s70')
        A('s_mul_i32 s%d, s72, 63' % (sAcc + 12))
        A('s_nop 15')
        A('s_lshl_b32 s3, s%d, 5' % sJ)
        A('s_add_u32 s3, s3, s%d' % sH)
        A('s_lshl_b32 s3, s3, 2')
        A('s_add_u32 s3, s3, s%d' % sW)
        A('s_lshl_b32 s3, s3, 6')
        A('s_add_u32 s3, s3, %d' % WS_STAMP)
        A('v_mov_b32 v2, s3')
        A('s_mov_b64 exec, 1')
        for k in range(16):
            A('v_mov_b32 v3, s%d' % (sAcc + k))
            A('global_store_dword v2, v3, s[4:5] offset:%d' % (4 * k))
    A.label('L_exit')
    A('s_endpgm')
    return A


if __name__ == '__main__':
    import sys
    fast = '--slow' not in sys.argv
    stamps = '--stamps' in sys.argv
    out = [x for x in sys.argv[1:] if not x.startswith('--')][0]
    A = gen_chain(fast=fast, stamps=stamps, opt=[x[2:] for x in sys.argv if x.startswith('--')])
    body = A.finalize(name='chain')
    code, desc = kernel_text('chain_kernel', body, 512, 102, 256)
    hdr = '; @launch kernel=chain_kernel grid=(256,1,1) block=(256,1,1) lds=163840\n.amdgcn_target "amdgcn-amd-amdhsa--gfx950"\n'
    open(out, 'w').write(hdr + code + desc)
```

```python
import struct

WS_KV = 0x0000000
WS_Q = 0x2000000
WS_KM = 0x3000000
WS_VM = 0x3400000
WS_PART = 0x3800000
WS_MEML = 0x3A00000
WS_MOD = 0x3C00000
WS_H = 0x3D00000
WS_STAMP = 0x4000000
WS_O = 0x5000000
WS_OP = 0x6000000
WS_X1 = 0x7800000
WS_H2 = 0x8000000
WS_G = 0x8400000
WS_WFRAG = 0x9000000

KA_X, KA_MEM0, KA_WQ, KA_WK, KA_WV, KA_WO, KA_SEG, KA_BX, KA_W1, KA_W2, KA_C, KA_WMOD, KA_OUT, KA_DBG, KA_WS = [8 * i for i in range(15)]


def f32bits(x):
    return struct.unpack('<I', struct.pack('<f', x))[0]


class Q:
    def __init__(self, A, name, maxn):
        self.A, self.name, self.maxn = A, name, maxn
        self.q = []

    def issue(self, text, tag=None):
        self.A(text)
        self.q.append(tag)

    def wait(self, tag):
        if tag not in self.q:
            return
        idx = len(self.q) - 1 - self.q[::-1].index(tag)
        n = len(self.q) - 1 - idx
        n = min(n, self.maxn)
        self.A('s_waitcnt %s(%d)' % (self.name, n))
        self.q = self.q[len(self.q) - n:] if n else []

    def waitall(self):
        self.A('s_waitcnt %s(0)' % self.name)
        self.q = []
```

```python
from asmlib import *
from layout import *
import math


def gen_mod():
    A = Asm()
    A('s_cmp_ge_u32 s2, 120')
    A('s_cbranch_scc1 L_mod_exit')
    A('s_load_dwordx4 s[4:7], s[0:1], %d' % KA_C)
    A('s_load_dwordx2 s[8:9], s[0:1], %d' % KA_WS)
    A('v_lshrrev_b32 v1, 2, v0')
    A('v_and_b32 v2, 3, v0')
    A('v_mul_u32_u24 v3, 7680, v1')
    A('v_lshl_add_u32 v3, v2, 4, v3')
    A('s_lshl_b32 s3, s2, 6')
    A('v_add_u32 v3, s3, v3')
    A('v_lshlrev_b32 v4, 1, v1')
    A('s_waitcnt lgkmcnt(0)')
    for i in range(10):
        A('global_load_ushort v%d, v4, s[4:5] offset:%d' % (10 + i, i * 128))
    for i in range(10):
        A('global_load_dwordx4 %s, v3, s[6:7]' % v(20 + 4 * i, 4))
        if i < 9:
            A('v_add_u32 v3, %d, v3' % (64 * 7680))
    A('s_mov_b32 s10, 0x%08x' % f32bits(-math.log2(math.e)))
    A('s_waitcnt vmcnt(10)')
    for i in range(10):
        r = 10 + i
        A('v_lshlrev_b32 v%d, 16, v%d' % (r, r))
        A('v_mul_f32 v5, s10, v%d' % r)
        A('v_exp_f32 v5, v5')
        A('v_add_f32 v5, 1.0, v5')
        A('v_rcp_f32 v5, v5')
        A('v_mul_f32 v%d, v%d, v5' % (r, r))
        A('v_cvt_pk_bf16_f32 v%d, v%d, v%d' % (r, r, r))
        A('v_and_b32 v%d, 0xffff0000, v%d' % (r, r))
    AC = 60
    for e in range(8):
        A('v_mov_b32 v%d, 0' % (AC + e))
    for i in range(10):
        A('s_waitcnt vmcnt(%d)' % (9 - i))
        for d in range(4):
            w = 20 + 4 * i + d
            A('v_lshlrev_b32 v5, 16, v%d' % w)
            A('v_and_b32 v6, 0xffff0000, v%d' % w)
            A('v_fmac_f32 v%d, v5, v%d' % (AC + 2 * d, 10 + i))
            A('v_fmac_f32 v%d, v6, v%d' % (AC + 2 * d + 1, 10 + i))
    for rot in (4, 8):
        for e in range(8):
            A('v_add_f32_dpp v%d, v%d, v%d row_ror:%d row_mask:0xf bank_mask:0xf' % (AC + e, AC + e, AC + e, rot))
    A('v_lshrrev_b32 v5, 4, v0')
    A('v_lshlrev_b32 v5, 7, v5')
    A('v_lshl_add_u32 v5, v2, 5, v5')
    A('v_and_b32 v6, 12, v0')
    A('v_cmp_eq_u32 vcc, 0, v6')
    A('s_and_saveexec_b64 s[12:13], vcc')
    A('ds_write_b128 v5, %s' % v(AC, 4))
    A('ds_write_b128 v5, %s offset:16' % v(AC + 4, 4))
    A('s_mov_b64 exec, s[12:13]')
    A('s_waitcnt lgkmcnt(0)')
    A('s_barrier')
    A('v_cmp_gt_u32 vcc, 32, v0')
    A('s_and_saveexec_b64 s[12:13], vcc')
    A('s_cbranch_execz L_mod_exit')
    A('v_lshlrev_b32 v5, 2, v0')
    for i in range(8):
        A('ds_read2_b32 %s, v5 offset0:%d offset1:%d' % (v(20 + 2 * i, 2), (2 * i * 32) % 256, ((2 * i + 1) * 32) % 256))
        if i == 3:
            A('v_add_u32 v5, 1024, v5')
    A('s_waitcnt lgkmcnt(0)')
    for st in (8, 4, 2, 1):
        for i in range(st):
            A('v_add_f32 v%d, v%d, v%d' % (20 + i, 20 + i, 20 + i + st))
    A('v_cvt_pk_bf16_f32 v20, v20, v20')
    A('v_and_b32 v20, 0xffff0000, v20')
    A('v_add_f32 v21, 1.0, v20')
    A('v_cvt_pk_bf16_f32 v21, v21, v21')
    A('v_and_b32 v21, 0xffff0000, v21')
    A('s_sub_u32 s14, s2, 20')
    A('s_cmp_lt_u32 s14, 20')
    A('s_cselect_b32 s15, 1, 0')
    A('s_sub_u32 s14, s2, 80')
    A('s_cmp_lt_u32 s14, 20')
    A('s_cselect_b32 s15, 1, s15')
    A('s_cmp_eq_u32 s15, 1')
    A('s_cselect_b64 vcc, -1, 0')
    A('v_cndmask_b32 v20, v20, v21, vcc')
    A('s_lshl_b32 s3, s2, 7')
    A('s_add_u32 s3, s3, %d' % WS_MOD)
    A('v_lshlrev_b32 v5, 2, v0')
    A('v_add_u32 v5, s3, v5')
    A('global_store_dword v5, v20, s[8:9]')
    A.label('L_mod_exit')
    A('s_endpgm')
    return A


def gen_ln(second, nsplit=4):
    A = Asm()
    nm = 'ln2' if second else 'ln1'
    A('s_cmp_ge_u32 s2, 128')
    A('s_cbranch_scc1 L_%s_exit' % nm)
    A('s_load_dwordx2 s[4:5], s[0:1], %d' % KA_X)
    A('s_load_dwordx2 s[8:9], s[0:1], %d' % KA_WS)
    A('v_lshrrev_b32 v1, 6, v0')
    A('v_readfirstlane_b32 s12, v1')
    A('v_and_b32 v1, 63, v0')
    A('v_lshrrev_b32 v2, 4, v1')
    A('v_and_b32 v3, 15, v1')
    A('v_mul_u32_u24 v4, 1280, v3')
    A('v_lshl_add_u32 v4, v2, 3, v4')
    A('s_mul_i32 s3, s2, %d' % (16 * 1280))
    A('s_mul_i32 s13, s12, 320')
    A('s_add_u32 s3, s3, s13')
    A('v_add_u32 v4, s3, v4')
    A('s_mul_i32 s3, s12, 640')
    A('s_add_u32 s3, s3, %d' % WS_MOD)
    A('v_lshlrev_b32 v5, 4, v2')
    A('v_add_u32 v5, s3, v5')
    A('v_lshlrev_b32 v6, 4, v1')
    A('s_waitcnt lgkmcnt(0)')
    XR, X, SH, SC, PT = 10, 32, 72, 112, 152
    if not second:
        for t in range(10):
            A('global_load_dwordx2 %s, v4, s[4:5] offset:%d' % (v(XR + 2 * t, 2), t * 32))
    else:
        A('s_mul_i32 s3, s2, 40')
        A('s_mul_i32 s13, s12, 10')
        A('s_add_u32 s3, s3, s13')
        A('s_lshl_b32 s14, s3, 10')
        A('s_add_u32 s16, s8, s14')
        A('s_addc_u32 s17, s9, 0')
        A('s_add_u32 s16, s16, %d' % (WS_X1 + 4096))
        A('s_addc_u32 s17, s17, 0')
        A('v_add_u32 v8, 8192, v6')
        for t in range(10):
            if t < 8:
                A('global_load_dwordx4 %s, v6, s[16:17] offset:%d' % (v(X + 4 * t, 4), t * 1024 - 4096))
            else:
                A('global_load_dwordx4 %s, v8, s[16:17] offset:%d' % (v(X + 4 * t, 4), (t - 8) * 1024 - 4096))
        A('v_add_u32 v5, %d, v5' % (3 * 2560))
    for t in range(10):
        A('global_load_dwordx4 %s, v5, s[8:9] offset:%d' % (v(SH + 4 * t, 4), t * 64))
        A('global_load_dwordx4 %s, v5, s[8:9] offset:%d' % (v(SC + 4 * t, 4), 2560 + t * 64))
    A('s_waitcnt vmcnt(20)')
    if not second:
        for e in range(0, 40, 2):
            xr = XR + e // 2
            A('v_lshlrev_b32 v%d, 16, v%d' % (X + e, xr))
            A('v_and_b32 v%d, 0xffff0000, v%d' % (X + e + 1, xr))

    A('s_lshl_b32 s3, s12, 6')
    A('v_lshlrev_b32 v7, 2, v3')
    A('v_add_u32 v4, s3, v7')

    def allred(r, t, off):
        A('v_mov_b32 v%d, v%d' % (t, r))
        A('v_permlane32_swap_b32 v%d, v%d' % (r, t))
        A('v_add_f32 v%d, v%d, v%d' % (r, r, t))
        A('v_mov_b32 v%d, v%d' % (t, r))
        A('v_permlane16_swap_b32 v%d, v%d' % (r, t))
        A('v_add_f32 v%d, v%d, v%d' % (r, r, t))
        A('ds_write_b32 v4, v%d offset:%d' % (r, off))
        A('s_waitcnt lgkmcnt(0)')
        A('s_barrier')
        A('ds_read2_b32 v[10:11], v7 offset0:%d offset1:%d' % (off // 4, off // 4 + 16))
        A('ds_read2_b32 v[12:13], v7 offset0:%d offset1:%d' % (off // 4 + 32, off // 4 + 48))
        A('s_waitcnt lgkmcnt(0)')
        A('v_add_f32 v10, v10, v11')
        A('v_add_f32 v12, v12, v13')
        A('v_add_f32 v%d, v10, v12' % r)
    A('v_pk_add_f32 v[8:9], %s, %s' % (v(X, 2), v(X + 2, 2)))
    for e in range(4, 40, 2):
        A('v_pk_add_f32 v[8:9], v[8:9], %s' % v(X + e, 2))
    A('v_add_f32 v8, v8, v9')
    allred(8, 9, 0)
    A('v_mul_f32 v8, 0x%08x, v8' % f32bits(-1.0 / 640))
    A('v_mov_b32 v9, v8')
    for e in range(0, 40, 2):
        A('v_pk_add_f32 %s, %s, v[8:9]' % (v(X + e, 2), v(X + e, 2)))
    A('v_pk_mul_f32 v[8:9], %s, %s' % (v(X, 2), v(X, 2)))
    for e in range(2, 40, 2):
        A('v_pk_fma_f32 v[8:9], %s, %s, v[8:9]' % (v(X + e, 2), v(X + e, 2)))
    A('v_add_f32 v8, v8, v9')
    allred(8, 9, 256)
    A('v_mov_b32 v9, 0x%08x' % f32bits(1e-5))
    A('v_fmac_f32 v9, 0x%08x, v8' % f32bits(1.0 / 640))
    A('v_rsq_f32 v8, v9')
    A('v_mov_b32 v9, v8')
    A('s_waitcnt vmcnt(0)')
    for e in range(0, 40, 2):
        A('v_pk_mul_f32 %s, %s, v[8:9]' % (v(X + e, 2), v(X + e, 2)))
        A('v_pk_fma_f32 %s, %s, %s, %s' % (v(X + e, 2), v(X + e, 2), v(SC + e, 2), v(SH + e, 2)))
        A('v_cvt_pk_bf16_f32 v%d, v%d, v%d' % (12 + e // 2, X + e, X + e + 1))
    A('s_mul_i32 s3, s2, 20')
    A('s_mul_i32 s13, s12, 5')
    A('s_add_u32 s3, s3, s13')
    A('s_lshl_b32 s3, s3, 10')
    A('s_add_u32 s16, s8, s3')
    A('s_addc_u32 s17, s9, 0')
    A('s_add_u32 s16, s16, %d' % ((WS_H2 if second else WS_H) + 2048))
    A('s_addc_u32 s17, s17, 0')
    for k in range(5):
        A('global_store_dwordx4 v6, %s, s[16:17] offset:%d' % (v(12 + 4 * k, 4), k * 1024 - 2048))
    A.label('L_%s_exit' % nm)
    A('s_endpgm')
    return A
```

```python
from asmlib import *
from layout import *
import math

SLOT = 40960
FR = 96
ACCS = [128, 160]
TMP = 64


def preg(nt, ks, lo=0, n=4):
    i = (nt * 20 + ks) * 4
    if i < 256:
        return a(i + lo, n)
    return v(192 + i - 256 + lo, n)


def panel_load(A, lg, stride, sWb, nm, hook=None):
    A('v_lshrrev_b32 v2, 3, v1')
    A('v_bfe_u32 v3, v1, 1, 2')
    A('v_bfe_u32 v4, v1, 4, 2')
    A('v_xor_b32 v3, v3, v4')
    A('v_mul_u32_u24 v2, %d, v2' % stride)
    A('v_lshl_add_u32 v2, v3, 5, v2')
    A('v_and_b32 v3, 1, v1')
    A('v_lshl_add_u32 v2, v3, 4, v2')
    A('s_mul_i32 s20, s12, 20480')
    A('s_add_u32 s20, s20, %d' % (2 * SLOT))
    A('v_lshrrev_b32 v3, 2, v1')
    A('v_bfe_u32 v8, v1, 3, 2')
    A('v_and_b32 v9, 3, v1')
    A('v_lshlrev_b32 v9, 3, v9')
    A('v_lshl_add_u32 v9, v3, 7, v9')
    A('v_add_u32 v9, s20, v9')
    for nt in range(4):
        A('v_xor_b32 v3, %d, v8' % nt)
        A('v_lshl_add_u32 v%d, v3, 5, v9' % (4 + nt))

    def dma(ks):
        for n in range(4):
            A('s_add_u32 m0, s20, %d' % ((ks % 5) * 4096 + n * 1024))
            A('global_load_lds_dwordx4 v2, s[%d:%d]' % (sWb, sWb + 1))
            A('s_add_u32 s%d, s%d, %d' % (sWb, sWb, 8 * stride))
            A('s_addc_u32 s%d, s%d, 0' % (sWb + 1, sWb + 1))
    for ks in range(5):
        dma(ks)
    issued = 5
    extra = 0
    for ks in range(20):
        A('s_waitcnt vmcnt(%d)' % (4 * (issued - ks - 1) + extra))
        for nt in range(4):
            for kh in range(2):
                lg.issue('ds_read_b64_tr_b16 %s, v%d offset:%d' % (preg(nt, ks, 2 * kh, 2), 4 + nt, (ks % 5) * 4096 + kh * 2048), ('p', ks))
        if ks >= 1 and issued < 20:
            lg.wait(('p', ks - 1))
            dma(issued)
            issued += 1
            if issued == 20 and hook:
                extra = hook()
    lg.waitall()


def gen_wsgemm(kind, nsets, npanels):
    A = Asm()
    lg = Q(A, 'lgkmcnt', 15)
    nm = kind
    A('s_cmp_ge_u32 s2, %d' % (nsets * npanels))
    A('s_cbranch_scc1 L_%s_exit' % nm)
    if kind == 'qkv':
        A('s_load_dwordx4 s[4:7], s[0:1], %d' % KA_WQ)
        A('s_load_dwordx2 s[10:11], s[0:1], %d' % KA_WV)
    else:
        A('s_load_dwordx2 s[4:5], s[0:1], %d' % KA_W1)
    A('s_load_dwordx2 s[8:9], s[0:1], %d' % KA_WS)
    A('v_lshrrev_b32 v1, 6, v0')
    A('v_readfirstlane_b32 s12, v1')
    A('v_and_b32 v1, 63, v0')
    A('s_mov_b32 s3, %d' % (-(-(1 << 32) // npanels)))
    A('s_mul_hi_u32 s13, s2, s3')
    A('s_mul_i32 s3, s13, %d' % npanels)
    A('s_sub_u32 s14, s2, s3')
    A('v_lshlrev_b32 v10, 4, v1')
    A('s_waitcnt lgkmcnt(0)')
    if kind == 'qkv':
        stride = 8192
        A('s_lshr_b32 s15, s14, 4')
        A('s_and_b32 s16, s14, 15')
        A('s_cmp_eq_u32 s15, 1')
        A('s_cselect_b32 s6, s10, s6')
        A('s_cselect_b32 s7, s11, s7')
        A('s_cmp_eq_u32 s15, 2')
        A('s_cselect_b32 s6, s4, s6')
        A('s_cselect_b32 s7, s5, s7')
        A('s_lshl_b32 s3, s16, 9')
        A('s_lshl_b32 s17, s12, 7')
        A('s_add_u32 s3, s3, s17')
        A('s_add_u32 s6, s6, s3')
        A('s_addc_u32 s7, s7, 0')
        A('s_lshr_b32 s3, s12, 1')
        A('s_lshl_b32 s17, s16, 1')
        A('s_add_u32 s17, s17, s3')
        A('s_and_b32 s18, s12, 1')
        A('s_lshl_b32 s21, s17, 14')
        A('s_lshl_b32 s3, s18, 11')
        A('s_add_u32 s22, s21, s3')
        A('s_add_u32 s23, s22, s3')
        A('s_add_u32 s23, s23, 8192')
        A('s_lshl_b32 s24, s17, 13')
        A('s_add_u32 s24, s24, s3')
        A('s_add_u32 s24, s24, %d' % WS_Q)
        A('s_mov_b32 s25, %d' % (32 * 16384))
        A('s_cmp_eq_u32 s15, 1')
        A('s_cselect_b32 s22, s23, s22')
        A('s_cmp_eq_u32 s15, 2')
        A('s_cselect_b32 s22, s24, s22')
        A('s_cselect_b32 s25, %d, s25' % (32 * 8192))
        hsrc = WS_H
    else:
        stride = 3456
        A('s_lshl_b32 s17, s14, 2')
        A('s_add_u32 s17, s17, s12')
        A('s_min_u32 s17, s17, 26')
        A('s_lshl_b32 s3, s17, 7')
        A('s_add_u32 s6, s4, s3')
        A('s_addc_u32 s7, s5, 0')
        A('s_lshl_b32 s22, s17, 11')
        A('s_add_u32 s22, s22, %d' % WS_G)
        A('s_mov_b32 s25, %d' % (2 * 54 * 1024))
        A('s_mov_b32 s36, 0x%08x' % f32bits(-math.log2(math.e)))
        hsrc = WS_H2
    A('s_mul_i32 s3, s13, s25')
    A('s_add_u32 s3, s3, s22')
    A('s_add_u32 s26, s8, s3')
    A('s_addc_u32 s27, s9, 0')
    A('s_mul_i32 s28, s25, %d' % nsets)
    A('s_mul_i32 s3, s13, %d' % SLOT)
    A('s_mul_i32 s29, s12, 10240')
    A('s_add_u32 s3, s3, s29')
    A('s_add_u32 s3, s3, %d' % hsrc)
    A('s_add_u32 s30, s8, s3')
    A('s_addc_u32 s31, s9, 0')
    A('s_mov_b32 s32, s13')
    A('s_mov_b32 s33, s29')
    A('s_mov_b32 s34, s13')
    A('v_add_u32 v11, 4096, v10')
    A('v_add_u32 v12, 8192, v10')

    def hdma():
        for blk, vr, cnt in ((0, 10, 4), (1, 11, 4), (2, 12, 2)):
            A('s_add_u32 m0, s33, %d' % (blk * 4096))
            for i in range(cnt):
                A('global_load_lds_dwordx4 v%d, s[30:31] offset:%d' % (vr, i * 1024))
        A('s_add_u32 s32, s32, %d' % nsets)
        A('s_cmp_lt_u32 s32, 64')
        A('s_cselect_b32 s3, %d, 0' % (nsets * SLOT))
        A('s_add_u32 s30, s30, s3')
        A('s_addc_u32 s31, s31, 0')
        A('s_add_u32 s33, s33, %d' % SLOT)
        A('s_sub_u32 s3, s33, %d' % (3 * SLOT))
        A('s_cmp_ge_u32 s33, %d' % (3 * SLOT))
        A('s_cselect_b32 s33, s3, s33')

    def hook():
        hdma()
        hdma()
        return 20
    panel_load(A, lg, stride, 6, nm, hook)
    A('s_waitcnt vmcnt(10)')
    A('s_barrier')
    A('v_mov_b32 v13, v10')
    A('s_mov_b32 s35, 0')
    if kind == 'qkv':
        A('s_cmp_eq_u32 s15, 1')
        A('s_cbranch_scc1 L_qkv_V')
        variants = ['K', 'V']
    else:
        variants = ['F']

    for var in variants:
        lab = 'L_%s_%s' % (nm, var)
        A.label(lab)
        lg.q = []

        def fread(ks, base=13):
            b = FR + (ks % 4) * 8
            k2 = ks % 20
            lg.issue('ds_read_b128 %s, v%d offset:%d' % (v(b, 4), base, k2 * 1024), None)
            lg.issue('ds_read_b128 %s, v%d offset:%d' % (v(b + 4, 4), base, 20480 + k2 * 1024), ('f', ks))

        def acc(p, rt, nt):
            return ACCS[p] + (rt * 4 + nt) * 4

        def epilogue_ops(p):
            ops = []
            for u in range(4):
                T = TMP + 4 * u
                if var == 'V':
                    srcs = [acc(p, 0, u), acc(p, 1, u)]
                    off = u * 1024
                    vr = 10
                elif var == 'K':
                    rt, pr = u >> 1, u & 1
                    srcs = [acc(p, rt, 2 * pr), acc(p, rt, 2 * pr + 1)]
                    off = pr * 1024
                    vr = 11 if rt else 10
                else:
                    rt, pr = u >> 1, u & 1
                    srcs = [acc(p, rt, 2 * pr), acc(p, rt, 2 * pr + 1)]
                    off = pr * 1024
                    vr = 14 if rt else 10
                for si, sr in enumerate(srcs):
                    for hh in range(2):
                        r0 = sr + 2 * hh
                        d = T + 2 * si + hh
                        if var == 'F':
                            t0, t1 = TMP + 16, TMP + 17
                            ops.append('v_cvt_pk_bf16_f32 v%d, v%d, v%d' % (d, r0, r0 + 1))
                            ops.append('v_lshlrev_b32 v%d, 16, v%d' % (r0, d))
                            ops.append('v_and_b32 v%d, 0xffff0000, v%d' % (r0 + 1, d))
                            ops.append('v_mul_f32 v%d, s36, v%d' % (t0, r0))
                            ops.append('v_mul_f32 v%d, s36, v%d' % (t1, r0 + 1))
                            ops.append('v_exp_f32 v%d, v%d' % (t0, t0))
                            ops.append('v_exp_f32 v%d, v%d' % (t1, t1))
                            ops.append('v_add_f32 v%d, 1.0, v%d' % (t0, t0))
                            ops.append('v_add_f32 v%d, 1.0, v%d' % (t1, t1))
                            ops.append('v_rcp_f32 v%d, v%d' % (t0, t0))
                            ops.append('v_rcp_f32 v%d, v%d' % (t1, t1))
                            ops.append('v_mul_f32 v%d, v%d, v%d' % (r0, r0, t0))
                            ops.append('v_mul_f32 v%d, v%d, v%d' % (r0 + 1, r0 + 1, t1))
                        ops.append('v_cvt_pk_bf16_f32 v%d, v%d, v%d' % (d, r0, r0 + 1))
                ops.append('global_store_dwordx4 v%d, %s, s[26:27] offset:%d' % (vr, v(T, 4), off))
            ops.append('s_add_u32 s26, s26, s28\ns_addc_u32 s27, s27, 0')
            return ops

        def segment(p, first):
            ep = [] if first else epilogue_ops(p ^ 1)
            per = -(-len(ep) // (15 * 8))
            for ks in range(20):
                lg.wait(('f', ks))
                b = FR + (ks % 4) * 8
                cnt = 0
                for nt in range(4):
                    for rt in range(2):
                        d = acc(p, rt, nt)
                        c = '0' if ks == 0 else v(d, 4)
                        if var == 'V':
                            A('v_mfma_f32_16x16x32_bf16 %s, %s, %s, %s' % (v(d, 4), v(b + 4 * rt, 4), preg(nt, ks), c))
                        else:
                            A('v_mfma_f32_16x16x32_bf16 %s, %s, %s, %s' % (v(d, 4), preg(nt, ks), v(b + 4 * rt, 4), c))
                        cnt += 1
                        if ks >= 1:
                            for _ in range(per):
                                if ep:
                                    A(ep.pop(0))
                        if cnt == 2:
                            if ks + 3 < 20:
                                fread(ks + 3)
                            else:
                                fread(ks + 3, 15)
                if ks == 16:
                    assert not ep
                    nst = 0 if first else 4
                    A('s_waitcnt vmcnt(%d)' % nst)
                    A('s_barrier')
                    hdma()
                    A('s_add_u32 s35, s35, %d' % SLOT)
                    A('s_cmp_ge_u32 s35, %d' % (3 * SLOT))
                    A('s_cselect_b32 s35, 0, s35')
                    A('v_add_u32 v15, s35, v10')
            A('v_mov_b32 v13, v15')
            lg.q = [(t[0], t[1] - 20) if t else None for t in lg.q]
            A('s_add_u32 s34, s34, %d' % nsets)
            A('s_cmp_ge_u32 s34, 64')

        if var == 'F':
            A('v_add_u32 v14, %d, v10' % (54 * 1024))
        for ks in range(3):
            fread(ks)
        segment(0, True)
        A('s_cbranch_scc1 %s_fin0' % lab)
        A.label(lab + '_loop')
        segment(1, False)
        A('s_cbranch_scc1 %s_fin1' % lab)
        segment(0, False)
        A('s_cbranch_scc0 %s_loop' % lab)
        for p in (0, 1):
            A.label('%s_fin%d' % (lab, p))
            A('s_nop 7')
            for o in epilogue_ops(p):
                A(o)
            A('s_endpgm')
    A.label('L_%s_exit' % nm)
    A('s_endpgm')
    return A
```

```python
import sys
from asmlib import *
from layout import *
import small, wsgemm, attn, chain

HDR = open('adaLN_cond__memory_aug_recurrent_mem_tr__dense_activation_silu__prompt.s.ref').read().split('; Override launch')[0]

def build(opt=()):
    ks = []
    def add(name, A, vgpr, grid, lds, accum=None):
        ks.append((name, A.finalize(name=name), vgpr, grid, lds, accum))
    add('mod_kernel', small.gen_mod(), 72, 120, 4096)
    add('ln1_kernel', small.gen_ln(False), 152, 128, 1024)
    add('qkv_kernel', wsgemm.gen_wsgemm('qkv', 5, 48), 512, 240, 163840, 256)
    add('chain_kernel', chain.gen_chain(opt=opt), 512, 256, 163840, 256)
    add('attn_kernel', attn.gen_attn(), 192, 512, 0)
    add('oproj_kernel', attn.gen_tgemm('oproj'), 232, 256, 163840)
    add('ln2_kernel', small.gen_ln(True), 152, 128, 1024)
    add('ffn1_kernel', wsgemm.gen_wsgemm('ffn1', 32, 7), 512, 224, 163840, 256)
    add('ffn2_kernel', attn.gen_tgemm('ffn2'), 232, 256, 163840)
    out = HDR
    for name, body, vgpr, grid, lds, accum in ks:
        out += '; @launch kernel=%s grid=(%d,1,1) block=(256,1,1) lds=%d\n' % (name, grid, lds)
    out += '.amdgcn_target "amdgcn-amd-amdhsa--gfx950"\n'
    descs = ''
    for name, body, vgpr, grid, lds, accum in ks:
        code, desc = kernel_text(name, body, vgpr, 102, accum)
        out += code
        descs += desc
    return out + descs

if __name__ == '__main__':
    outp = [x for x in sys.argv[1:] if not x.startswith('--')][0]
    open(outp, 'w').write(build([x[2:] for x in sys.argv if x.startswith('--')]))
```
